```python
import torch

def _softmax(x, axis=-1):
    return torch.softmax(x, dim=axis)
def _gelu(x):
    return torch.nn.functional.gelu(x, approximate="tanh")
def _silu(x):
    return torch.nn.functional.silu(x)
def _sigmoid(x):
    return torch.sigmoid(x)
def _layernorm(x, axis=-1, eps=1e-5):
    m = x.mean(dim=axis, keepdim=True)
    v = x.var(dim=axis, keepdim=True, unbiased=False)
    return (x - m) / torch.sqrt(v + eps)
def _scatter_add(tgt, idx, src, axis=0):
    return tgt.clone().index_add_(axis, idx, src)
def _segment_sum(src, seg, n):
    out = torch.zeros((n,) + src.shape[1:], dtype=src.dtype)
    return out.index_add_(0, seg, src)
def _pad(x, pw):
    flat = tuple(v for pair in reversed(pw) for v in pair)
    return torch.nn.functional.pad(x, flat)

kernel_name = 'parallel_sum__mha_block__glu_gated_swiglu__prompt'

def setup_inputs():

    _w = (lambda a: (lambda t: t.to(torch.bfloat16) if t.is_floating_point() else t)(torch.as_tensor(a)))
    def _A_setup():
        B, S, D, H = 1, 2048, 512, 32
        return {
            "x": _w((lambda *s: torch.randn(*s, dtype=torch.bfloat16) * 0.05)(B, S, D)),
            "wqkv": _w((lambda *s: torch.randn(*s, dtype=torch.bfloat16) * 0.05)(D, 3 * D)),
            "wo": _w((lambda *s: torch.randn(*s, dtype=torch.bfloat16) * 0.05)(D, D)),
        }
    _A_in = _A_setup()

    def _B_setup():
        B, S, D, F = 1, 2048, 512, 1376
        return {
            "x": _w((lambda *s: torch.randn(*s, dtype=torch.bfloat16) * 0.05)(B, S, D)),
            "w1": _w((lambda *s: torch.randn(*s, dtype=torch.bfloat16) * 0.4)(D, F) * (2.0 / D) ** 0.5),
            "w3": _w((lambda *s: torch.randn(*s, dtype=torch.bfloat16) * 0.4)(D, F) * (2.0 / D) ** 0.5),
            "w2": _w((lambda *s: torch.randn(*s, dtype=torch.bfloat16) * 0.4)(F, D) * (2.0 / F) ** 0.5),
        }
    _B_in = _B_setup()

    return {
        "A_x": _A_in["x"],
        "A_wqkv": _A_in["wqkv"],
        "A_wo": _A_in["wo"],
        "B_x": _B_in["x"],
        "B_w1": _B_in["w1"],
        "B_w3": _B_in["w3"],
        "B_w2": _B_in["w2"],
    }

def reference(A_x, A_wqkv, A_wo, B_x, B_w1, B_w3, B_w2):
    def _A_ref(x, wqkv, wo):
        B, S, D = x.shape
        H = 32
        Dh = D // H
        qkv = (lambda x, *d: x.permute(*d))((x @ wqkv).reshape(B, S, 3, H, Dh), 2, 0, 3, 1, 4)
        q, k, v = qkv[0], qkv[1], qkv[2]
        scores = torch.einsum("bhqd,bhkd->bhqk", q, k) * (Dh ** -0.5)
        p = _softmax(scores, axis=-1)
        o = torch.einsum("bhqk,bhkd->bhqd", p, v)
        return (lambda x, *d: x.permute(*d))(o, 0, 2, 1, 3).reshape(B, S, D) @ wo

    def _B_ref(x, w1, w3, w2):
        gate = torch.einsum("bsd,df->bsf", x, w1)
        up = torch.einsum("bsd,df->bsf", x, w3)
        h = _silu(gate) * up
        out = torch.einsum("bsf,fd->bsd", h, w2)
        return out

    x = A_x
    xn = _layernorm(x, axis=-1)
    return x + _A_ref(xn, A_wqkv, A_wo) + _B_ref(xn, B_w1, B_w3, B_w2)
```

```python
class Asm:
    def __init__(self):
        self.lines = []
        self._uid = 0
    def __call__(self, s=""):
        for l in s.split("\n"):
            self.lines.append(l)
    def e(self, op, *args, mods=""):
        a = ", ".join(str(x) for x in args)
        self.lines.append(f"  {op} {a}{(' ' + mods) if mods else ''}")
    def label(self, name):
        self.lines.append(f"{name}:")
    def uid(self, p="L"):
        self._uid += 1
        return f"{p}_{self._uid}"
    def text(self):
        return "\n".join(self.lines) + "\n"

def v(i, n=1):
    return f"v{i}" if n == 1 else f"v[{i}:{i+n-1}]"
def s(i, n=1):
    return f"s{i}" if n == 1 else f"s[{i}:{i+n-1}]"
def a(i, n=1):
    return f"a{i}" if n == 1 else f"a[{i}:{i+n-1}]"

def interleave(main, fill, start=0, end=None):
    if end is None: end = len(main)
    n = end - start
    out = []
    fi = 0
    nf = len(fill)
    for i, m in enumerate(main):
        out.append(m)
        if start <= i < end:
            k = i - start + 1
            target = (nf * k + n - 1) // n if n else nf
            target = min(nf, (nf * k) // n) if k < n else nf
            while fi < target:
                out.append(fill[fi]); fi += 1
    while fi < nf:
        out.append(fill[fi]); fi += 1
    return out

KD = """.p2align 6
.amdhsa_kernel {name}
  .amdhsa_next_free_vgpr {vgpr}
  .amdhsa_next_free_sgpr {sgpr}
  .amdhsa_accum_offset {acc}
  .amdhsa_group_segment_fixed_size 0
  .amdhsa_kernarg_size 80
  .amdhsa_user_sgpr_count 2
  .amdhsa_user_sgpr_kernarg_segment_ptr 1
  .amdhsa_system_sgpr_workgroup_id_x 1
  .amdhsa_float_denorm_mode_32 3
.end_amdhsa_kernel
"""
```

```python
import sys
from layout import *
NAME = "parallel_sum__mha_block__glu_gated_swiglu__prompt"
HEAD = """; Kernarg layout (80 bytes): A_x, A_wqkv, A_wo, B_x, B_w1, B_w3, B_w2, d_out, d_debug, d_ws
"""
def assemble(kernels):
    out = [HEAD.rstrip()]
    for (label, text, kd, grid, block, lds) in kernels:
        out.append(f"; @launch kernel={label} grid=({grid},1,1) block=({block},1,1) lds={lds}")
    out.append('.amdgcn_target "amdgcn-amd-amdhsa--gfx950"')
    out.append(".text")
    seen = set()
    for (label, text, kd, grid, block, lds) in kernels:
        if label in seen: continue
        seen.add(label)
        out.append(text)
    out.append('.section .rodata,"a"')
    seen = set()
    for (label, text, kd, grid, block, lds) in kernels:
        if label in seen: continue
        seen.add(label)
        out.append(kd)
    return "\n".join(out) + "\n"
```

```python
from asmlib import *
from layout import *
import struct, copy
K1_LDS = 163840
PROF1 = 0x1740000
def f32hex(x):
    return "0x%08x" % struct.unpack("<I", struct.pack("<f", x))[0]
LOG2E = 1.4426950408889634
PERM = [0,4,7,11, 1,5,8,12, 2,6,9,13, 3,10,14,15]
RING = 65536
NSLOT = 6

class VM:
    def __init__(self): self.ops = []
    def add(self, tag): self.ops.append(tag)
    def after(self, tag):
        idx = [i for i, o in enumerate(self.ops) if o == tag]
        if not idx: return None
        return len(self.ops) - 1 - idx[-1]
    def clone(self):
        c = VM(); c.ops = list(self.ops); return c

def gen_k1(name, prof=False, st=""):
    A = Asm()
    stm = (" " + st) if st else ""
    vL16, vWA, vWB = 2, 3, 4
    vWR = [[5, 6], [7, 8]]
    vS1 = [[9, 10], [11, 12]]
    vSA, vSB, vVst, vKM = 13, 14, 15, 1
    T = 16
    FB = [48, 56]
    ACC = [64, 96]
    XF = 128
    sX, sA, sB, sWS = 8, 12, 16, 20
    pQKV, pW1, pW3, pW2, pWO = 24, 26, 28, 30, 32
    sW, sRb, sCh, sRb16, sCg = 34, 35, 36, 37, 38
    sOffA, sOffB, sStr = 39, 40, 41
    sRb32 = 42
    sO1, sO2, sO3 = 43, 44, 45
    sTrS, sTrD = 46, 47
    sTr = 48
    sT0, sT1, sT2, sT3 = 52, 53, 54, 55
    sC1 = 56
    sNA, sNB, sNStr = 57, 58, 59
    sKMo = 60
    sE0, sE1 = 75, 76

    A(f".globl {name}\n.p2align 8\n.type {name},@function\n{name}:")
    A.e("s_cmp_ge_u32", "s2", 256)
    A.e("s_cbranch_scc1", f"{name}_exit")
    A.e("s_load_dwordx4", s(4,4), s(0,2), KA_X)
    A.e("s_load_dwordx2", s(pWO,2), s(0,2), KA_WO)
    A.e("s_load_dwordx2", s(pW1,2), s(0,2), KA_W1)
    A.e("s_load_dwordx2", s(pW3,2), s(0,2), KA_W3)
    A.e("s_load_dwordx2", s(pW2,2), s(0,2), KA_W2)
    A.e("s_load_dwordx2", s(62,2), s(0,2), KA_WS)
    if prof:
        A.e("s_memtime", s(64,2)); A.e("s_memrealtime", s(66,2))
    A.e("s_and_b32", "s3", "s2", 7)
    A.e("s_lshr_b32", s(sT0), "s2", 3)
    A.e("s_and_b32", s(sT1), "s3", 1)
    A.e("s_lshl_b32", s(sT1), s(sT1), 3)
    A.e("s_and_b32", s(sT2), s(sT0), 7)
    A.e("s_add_u32", s(sRb16), s(sT1), s(sT2))
    A.e("s_lshr_b32", s(sT1), "s3", 1)
    A.e("s_lshl_b32", s(sT1), s(sT1), 2)
    A.e("s_lshr_b32", s(sT2), s(sT0), 3)
    A.e("s_add_u32", s(sT1), s(sT1), s(sT2))
    A.e("s_lshl_b32", s(sT1), s(sT1), 2)
    pc = sum(p << (4*i) for i, p in enumerate(PERM))
    A.e("s_mov_b32", s(sT2), hex(pc & 0xffffffff))
    A.e("s_mov_b32", s(sT3), hex(pc >> 32))
    A.e("s_lshr_b64", s(sT2,2), s(sT2,2), s(sT1))
    A.e("s_and_b32", s(sCg), s(sT2), 15)
    A.e("v_lshrrev_b32", "v1", 6, "v0")
    A.e("v_and_b32", v(T), 63, "v0")
    A.e("v_readfirstlane_b32", s(sW), "v1")
    A.e("v_lshlrev_b32", v(vL16), 4, v(T))
    A.e("s_waitcnt", "lgkmcnt(0)")
    A.e("s_and_b32", s(sRb), s(sW), 3)
    A.e("s_lshr_b32", s(sCh), s(sW), 2)
    A.e("s_lshl_b32", s(sRb32), s(sRb16), 2)
    A.e("s_add_u32", s(sRb32), s(sRb32), s(sRb))
    A.e("s_mov_b32", s(pQKV), "s6"); A.e("s_mov_b32", s(pQKV+1), "s7")
    for (r, p, n) in ((sX, 4, S*D*2), (sWS, 62, WS_END)):
        A.e("s_mov_b32", s(r), s(p)); A.e("s_mov_b32", s(r+1), s(p+1)); A.e("s_mov_b32", s(r+2), n); A.e("s_mov_b32", s(r+3), "0x20000")
    vm = VM()
    lane = T
    A.e("v_lshrrev_b32", v(T+1), 3, v(lane))
    A.e("v_and_b32", v(T+2), 7, v(lane))
    A.e("s_lshl_b32", s(sT0), s(sW), 3)
    A.e("v_add_u32", v(T+3), s(sT0), v(T+1))
    A.e("v_lshlrev_b32", v(T+4), 10, v(T+3))
    A.e("v_lshlrev_b32", v(T+5), 4, v(T+2))
    A.e("v_add_u32", v(T+4), v(T+4), v(T+5))
    A.e("s_lshl_b32", s(sT0), s(sRb16), 17)
    A.e("s_add_u32", s(sT1), s(sT0), 65536)
    for c in range(8):
        A.e("buffer_load_dwordx4", v(ACC[0]+4*c,4), v(T+4), s(sX,4), s(sT0), mods=f"offen offset:{c*128}")
        vm.add("xa")
    for c in range(8):
        A.e("buffer_load_dwordx4", v(ACC[1]+4*c,4), v(T+4), s(sX,4), s(sT1), mods=f"offen offset:{c*128}")
        vm.add("xb")
    A.e("s_lshl_b32", s(sT0), s(sCg), 1)
    A.e("s_add_u32", s(sT1), s(sCg), 5)
    A.e("s_cmp_lt_u32", s(sCg), 5)
    A.e("s_cselect_b32", s(sT0), s(sT0), s(sT1))
    A.e("s_lshl_b32", s(sOffA), s(sT0), 7)
    A.e("s_mov_b32", s(sOffB), s(sOffA))
    A.e("s_mov_b32", s(sStr), 64*2752)
    A.e("s_mul_i32", s(sT1), s(sRb32), NFS*1024)
    A.e("s_add_u32", s(sT1), s(sT1), WS_HF)
    A.e("s_lshl_b32", s(sT2), s(sCh), 11)
    A.e("s_add_u32", s(sT1), s(sT1), s(sT2))
    A.e("s_lshl_b32", s(sT2), s(sT0), 12)
    A.e("s_add_u32", s(sO1), s(sT1), s(sT2))
    def srd(r, p, n):
        A.e("s_mov_b32", s(r), s(p)); A.e("s_mov_b32", s(r+1), s(p+1)); A.e("s_mov_b32", s(r+2), n); A.e("s_mov_b32", s(r+3), "0x20000")
    srd(sA, pW1, D*F*2); srd(sB, pW3, D*F*2)
    def q4_voffsets(stride):
        A.e("v_lshrrev_b32", v(T+6), 3, v(lane))
        A.e("s_lshl_b32", s(sT0), s(sW), 3)
        A.e("v_add_u32", v(T+6), s(sT0), v(T+6))
        A.e("s_mov_b32", s(sT0), stride)
        A.e("v_mul_lo_u32", v(T+6), v(T+6), s(sT0))
        A.e("v_lshrrev_b32", v(T+7), 4, v(lane))
        A.e("v_and_b32", v(T+7), 1, v(T+7))
        A.e("v_lshlrev_b32", v(T+7), 5, v(T+7))
        A.e("v_and_b32", v(T+8), 7, v(lane))
        A.e("v_lshlrev_b32", v(T+8), 4, v(T+8))
        A.e("v_xor_b32", v(T+8), v(T+7), v(T+8))
        A.e("v_add_u32", v(vWA), v(T+6), v(T+8))
        A.e("v_xor_b32", v(T+8), 64, v(T+8))
        A.e("v_add_u32", v(vWB), v(T+6), v(T+8))
    q4_voffsets(2752)
    def dma_q4(n):
        slot = RING + (n % NSLOT)*16384
        A.e("s_lshl_b32", s(sT0), s(sW), 10)
        A.e("s_add_u32", "m0", s(sT0), slot)
        A.e("s_add_u32", s(sT1), s(sT0), slot + 8192)
        A.e("buffer_load_dwordx4", v(vWA), s(sA,4), s(sOffA), mods="offen lds")
        A.e("s_mov_b32", "m0", s(sT1))
        A.e("s_add_u32", s(sOffA), s(sOffA), s(sStr))
        A.e("buffer_load_dwordx4", v(vWB), s(sB,4), s(sOffB), mods="offen lds")
        A.e("s_add_u32", s(sOffB), s(sOffB), s(sStr))
        vm.add(("w", n)); vm.add(("w", n))
    for n in range(5): dma_q4(n)
    lab_x = A.uid(name+"_px"); lab_d = A.uid(name+"_pd")
    A.e("s_cmp_lt_u32", s(sCg), 5)
    A.e("s_cbranch_scc0", lab_x)
    A.e("s_lshl_b32", s(sT0), s(sCg), 1)
    A.e("s_add_u32", s(sT0), s(sT0), 1)
    A.e("s_lshl_b32", s(sNA), s(sT0), 7)
    A.e("s_mov_b32", s(sNB), s(sNA))
    A.e("s_add_u32", s(sO2), s(sO1), 4096)
    A.e("s_branch", lab_d)
    A.label(lab_x)
    A.e("s_sub_u32", s(sT0), s(sCg), 5)
    A.e("s_lshl_b32", s(sNA), s(sT0), 8)
    A.e("s_add_u32", s(sNB), s(sNA), 128)
    A.e("s_and_b32", s(sT1), s(sT0), 3)
    A.e("s_lshl_b32", s(sT1), s(sT1), 3)
    A.e("s_lshl_b32", s(sT2), s(sCh), 1)
    A.e("s_add_u32", s(sT1), s(sT1), s(sT2))
    A.e("s_lshl_b32", s(sT2), s(sT1), 8)
    A.e("s_lshl_b32", s(sT3), s(sRb32), 2)
    A.e("s_add_u32", s(sKMo), s(sT2), s(sT3))
    A.e("s_lshl_b32", s(sT1), s(sT1), 16)
    A.e("s_lshr_b32", s(sT2), s(sT0), 2)
    A.e("s_lshl_b32", s(sT2), s(sT2), 21)
    A.e("s_add_u32", s(sT1), s(sT1), s(sT2))
    A.e("s_lshl_b32", s(sT2), s(sRb32), 10)
    A.e("s_add_u32", s(sO2), s(sT1), s(sT2))
    A.label(lab_d)
    A.e("s_lshl_b32", s(sT0), s(sCg), 1)
    A.e("s_add_u32", s(sT0), s(sT0), 24)
    A.e("s_lshl_b32", s(sT0), s(sT0), 16)
    A.e("s_lshl_b32", s(sT1), s(sRb32), 10)
    A.e("s_add_u32", s(sT0), s(sT0), s(sT1))
    A.e("s_add_u32", s(sT0), s(sT0), WS_VF)
    A.e("s_mul_i32", s(sT1), s(sRb32), NFS*1024)
    A.e("s_add_u32", s(sT2), s(sCg), 84-5)
    A.e("s_lshl_b32", s(sT2), s(sT2), 10)
    A.e("s_add_u32", s(sT1), s(sT1), s(sT2))
    A.e("s_add_u32", s(sT1), s(sT1), WS_HF)
    A.e("s_cmp_lt_u32", s(sCg), 4)
    A.e("s_cselect_b32", s(sO3), s(sT0), s(sT1))
    A.e("s_sub_u32", s(sT1), "s2", 236)
    A.e("s_cmp_lt_u32", "s2", 236)
    A.e("s_cselect_b32", s(sT0), "s2", s(sT1))
    A.e("s_lshr_b32", s(sT1), s(sT0), 1)
    A.e("s_and_b32", s(sT0), s(sT0), 1)
    A.e("s_cmp_lt_u32", s(sT1), 86)
    A.e("s_cselect_b32", s(sTr), s(pW2), s(pWO))
    A.e("s_cselect_b32", s(sTr+1), s(pW2+1), s(pWO+1))
    A.e("s_mov_b32", s(sT3), D*D*2)
    A.e("s_cselect_b32", s(sTr+2), F*D*2, s(sT3))
    A.e("s_mov_b32", s(sTr+3), "0x20000")
    A.e("s_sub_u32", s(sT2), s(sT1), 86)
    A.e("s_cmp_lt_u32", s(sT1), 86)
    A.e("s_cselect_b32", s(sT2), s(sT1), s(sT2))
    A.e("s_lshl_b32", s(sTrS), s(sT2), 14)
    A.e("s_lshl_b32", s(sT3), s(sT0), 9)
    A.e("s_add_u32", s(sTrS), s(sTrS), s(sT3))
    A.e("s_lshl_b32", s(sT3), s(sT0), 3)
    A.e("s_add_u32", s(sT3), s(sT3), s(sW))
    A.e("s_mul_i32", s(sT0), s(sT3), NFS*1024)
    A.e("s_add_u32", s(sT0), s(sT0), WS_W2F)
    A.e("s_lshl_b32", s(sT3), s(sT3), 15)
    A.e("s_add_u32", s(sT3), s(sT3), WS_WOF)
    A.e("s_cmp_lt_u32", s(sT1), 86)
    A.e("s_cselect_b32", s(sT0), s(sT0), s(sT3))
    A.e("s_lshl_b32", s(sT2), s(sT2), 10)
    A.e("s_add_u32", s(sTrD), s(sT0), s(sT2))
    A.e("v_and_b32", v(T+6), 15, v(T+3))
    A.e("v_xor_b32", v(T+6), v(T+6), v(T+2))
    A.e("v_lshlrev_b32", v(T+6), 4, v(T+6))
    A.e("v_lshlrev_b32", v(T+9), 10, v(T+3))
    A.e("v_add_u32", v(T+9), v(T+9), v(T+6))
    A.e("v_xor_b32", v(T+10), 128, v(T+9))
    A.e("v_and_b32", v(T+11), 31, v(lane))
    A.e("s_and_b32", s(sT0), s(sRb), 1)
    A.e("s_lshl_b32", s(sT0), s(sT0), 5)
    A.e("v_add_u32", v(T+11), s(sT0), v(T+11))
    A.e("v_lshlrev_b32", v(T+11), 10, v(T+11))
    A.e("v_lshrrev_b32", v(T+6), 5, v(lane))
    A.e("v_and_b32", v(T+7), 15, v(lane))
    A.e("v_xor_b32", v(T+6), v(T+6), v(T+7))
    A.e("v_lshlrev_b32", v(T+6), 4, v(T+6))
    A.e("v_add_u32", v(T+11), v(T+11), v(T+6))
    A.e("v_lshrrev_b32", v(T+6), 4, v(lane))
    A.e("v_and_b32", v(T+7), 1, v(T+6))
    A.e("v_lshrrev_b32", v(T+6), 1, v(T+6))
    A.e("v_and_b32", v(T+8), 15, v(lane))
    A.e("v_lshrrev_b32", v(T+12), 2, v(T+8))
    A.e("v_and_b32", v(T+8), 3, v(T+8))
    A.e("v_lshlrev_b32", v(T+13), 3, v(T+6))
    A.e("v_add_u32", v(T+13), v(T+13), v(T+12))
    A.e("v_lshlrev_b32", v(T+13), 7, v(T+13))
    A.e("v_lshlrev_b32", v(T+14), 13, v(T+7))
    A.e("v_add_u32", v(T+13), v(T+13), v(T+14))
    A.e("v_lshrrev_b32", v(T+14), 1, v(T+12))
    A.e("v_lshlrev_b32", v(T+15), 1, v(T+7))
    A.e("v_or_b32", v(T+14), v(T+14), v(T+15))
    A.e("s_lshl_b32", s(sT0), s(sCh), 1)
    A.e("v_xor_b32", v(T+14), s(sT0), v(T+14))
    A.e("v_lshlrev_b32", v(T+14), 5, v(T+14))
    A.e("v_lshlrev_b32", v(T+15), 3, v(T+8))
    A.e("v_add_u32", v(T+14), v(T+14), v(T+15))
    A.e("v_add_u32", v(T+13), v(T+13), v(T+14))
    A.e("v_add_u32", v(vWR[0][0]), RING, v(T+13))
    A.e("v_xor_b32", v(vWR[0][1]), 32, v(vWR[0][0]))
    A.e("v_add_u32", v(vWR[1][0]), 49152, v(vWR[0][0]))
    A.e("v_add_u32", v(vWR[1][1]), 49152, v(vWR[0][1]))
    for j in range(2):
        A.e("v_xor_b32", v(T+13), j, v(T+7))
        A.e("v_lshlrev_b32", v(T+13), 2, v(T+13))
        A.e("v_add_u32", v(T+13), v(T+13), v(T+12))
        A.e("v_lshlrev_b32", v(T+14), 3, v(T+6))
        A.e("v_add_u32", v(T+13), v(T+13), v(T+14))
        A.e("v_lshlrev_b32", v(T+13), 5, v(T+13))
        A.e("v_lshlrev_b32", v(T+14), 13, v(T+7))
        A.e("v_add_u32", v(T+13), v(T+13), v(T+14))
        A.e("v_lshlrev_b32", v(T+14), 3, v(T+8))
        A.e("v_add_u32", v(T+13), v(T+13), v(T+14))
        A.e("v_add_u32", v(vS1[0][j]), RING, v(T+13))
        A.e("v_add_u32", v(vS1[1][j]), RING + 49152, v(T+13))
    vTr = T+30
    A.e("v_lshlrev_b32", v(T+13), 2, v(T+6))
    A.e("v_add_u32", v(T+13), v(T+13), v(T+12))
    A.e("v_lshlrev_b32", v(T+13), 9, v(T+13))
    A.e("v_lshlrev_b32", v(T+14), 5, v(T+7))
    A.e("v_add_u32", v(T+13), v(T+13), v(T+14))
    A.e("v_lshlrev_b32", v(T+14), 3, v(T+8))
    A.e("v_add_u32", v(T+13), v(T+13), v(T+14))
    A.e("s_lshl_b32", s(sT0), s(sW), 6)
    A.e("v_add_u32", v(vTr), s(sT0), v(T+13))
    ones = sC1
    A.e("s_mov_b32", s(ones), "0x3f803f80")
    A.e("s_mov_b32", s(sT3), "0xffff0000")
    def layernorm(X):
        s1, s2, m, rs, nb, t0 = T+16, T+17, T+18, T+20, T+22, T+24
        A.e("v_mov_b32", v(s1), 0); A.e("v_mov_b32", v(s2), 0)
        for i in range(32):
            A.e("v_dot2_f32_bf16", v(s1), v(X+i), s(ones), v(s1))
            A.e("v_dot2_f32_bf16", v(s2), v(X+i), v(X+i), v(s2))
        A.e("s_nop", 2)
        for mod in ("quad_perm:[1,0,3,2]", "quad_perm:[2,3,0,1]", "row_half_mirror"):
            A.e("v_add_f32_dpp", v(s1), v(s1), v(s1), mods=f"{mod} row_mask:0xf bank_mask:0xf")
            A.e("v_add_f32_dpp", v(s2), v(s2), v(s2), mods=f"{mod} row_mask:0xf bank_mask:0xf")
            A.e("s_nop", 0)
        A.e("v_mul_f32", v(m), f32hex(1.0/512), v(s1))
        A.e("v_mul_f32", v(s2), f32hex(1.0/512), v(s2))
        A.e("v_fma_f32", v(s2), f"-{v(m)}", v(m), v(s2))
        A.e("v_max_f32", v(s2), 0, v(s2))
        A.e("v_add_f32", v(s2), f32hex(1e-5), v(s2))
        A.e("v_rsq_f32", v(rs), v(s2))
        A.e("s_nop", 0)
        A.e("v_mul_f32", v(nb), v(m), v(rs))
        A.e("v_sub_f32", v(nb), 0, v(nb))
        for i in range(32):
            t = t0 + 2*(i % 2)
            A.e("v_lshlrev_b32", v(t), 16, v(X+i))
            A.e("v_and_b32", v(t+1), s(sT3), v(X+i))
            A.e("v_pk_fma_f32", v(t,2), v(t,2), v(rs,2), v(nb,2), mods="op_sel_hi:[1,0,0]")
            A.e("v_cvt_pk_bf16_f32", v(X+i), v(t), v(t+1))
    def image_write(X):
        for c in range(8):
            A.e("ds_write_b128", v(T+9 + (c & 1)), v(X+4*c,4), mods=f"offset:{(c>>1)*256}")
    def frag_read():
        for q in range(8):
            A.e("v_xor_b32", v(T+26 + (q & 1)), 32*q, v(T+11))
            for j in range(4):
                A.e("ds_read_b128", v(XF + 4*(q + 8*j),4), v(T+26 + (q & 1)), mods=f"offset:{j*256}")
    A.e("s_waitcnt", f"vmcnt({vm.after('xa')})")
    if prof: A.e("s_memtime", s(78,2))
    layernorm(ACC[0])
    image_write(ACC[0])
    A.e("s_waitcnt", f"vmcnt({vm.after('xb')}) lgkmcnt(0)")
    A.e("s_barrier")
    if prof: A.e("s_memtime", s(80,2))
    lab = A.uid(name+"_ra")
    A.e("s_cmp_lt_u32", s(sRb), 2)
    A.e("s_cbranch_scc0", lab)
    frag_read()
    A.label(lab)
    layernorm(ACC[1])
    A.e("s_waitcnt", "lgkmcnt(0)")
    A.e("s_barrier")
    image_write(ACC[1])
    A.e("s_waitcnt", "lgkmcnt(0)")
    A.e("s_barrier")
    lab = A.uid(name+"_rb")
    A.e("s_cmp_lt_u32", s(sRb), 2)
    A.e("s_cbranch_scc1", lab)
    frag_read()
    A.label(lab)
    if prof:
        A.e("s_memtime", s(68,2))
    def v_voffset(hstride):
        A.e("v_and_b32", v(T+13), 63, "v0")
        A.e("v_lshrrev_b32", v(T+14), 4, v(T+13))
        A.e("v_and_b32", v(T+14), 1, v(T+14))
        A.e("s_mov_b32", s(sT0), hstride*65536)
        A.e("v_mul_lo_u32", v(T+14), v(T+14), s(sT0))
        A.e("v_lshrrev_b32", v(T+15), 5, v(T+13))
        A.e("v_lshlrev_b32", v(T+15), 8, v(T+15))
        A.e("v_add_u32", v(T+14), v(T+14), v(T+15))
        A.e("v_and_b32", v(T+15), 15, v(T+13))
        A.e("v_lshlrev_b32", v(T+15), 4, v(T+15))
        A.e("v_add_u32", v(vVst), v(T+14), v(T+15))

    def E(op, *a, mods="", tag=None):
        def f(vmx):
            A.e(op, *a, mods=mods)
            if tag is not None: vmx.add(tag)
        return f
    def epi_gu(acc, off_expr_list):
        L = []
        for (tb, so, imm) in off_expr_list:
            for r in range(8):
                g, u = tb + r, tb + 8 + r
                t = T + 2*(r % 4)
                L.append(E("v_mul_f32", v(t), f32hex(-LOG2E), v(g)))
                L.append(E("v_exp_f32", v(t), v(t)))
                L.append(E("v_mul_f32", v(u), v(g), v(u)))
                L.append(E("v_add_f32", v(t), 1.0, v(t)))
                L.append(E("v_rcp_f32", v(t), v(t)))
                L.append(E("s_nop", 0))
                L.append(E("v_mul_f32", v(g), v(u), v(t)))
                if r % 2 == 1:
                    L.append(E("v_cvt_pk_bf16_f32", v(T+8 + r//2), v(g-1), v(g)))
            L.append(E("buffer_store_dwordx4", v(T+8,4), v(vL16), s(sWS,4), s(so), mods=f"offen offset:{imm}"+stm, tag="st"))
            L.append(E("s_nop", 0))
        return L
    def epi_qk(tiles, so, is_q, hstride):
        L = []
        for (tb, uu) in tiles:
            for i in range(8):
                if is_q:
                    L.append(E("v_mul_f32", v(tb+2*i), f32hex(0.25*LOG2E), v(tb+2*i)))
                    L.append(E("v_mul_f32", v(tb+2*i+1), f32hex(0.25*LOG2E), v(tb+2*i+1)))
                L.append(E("v_cvt_pk_bf16_f32", v(T+i), v(tb+2*i), v(tb+2*i+1)))
            L.append(E("s_add_u32", s(sE0), s(so), uu*65536))
            L.append(E("s_add_u32", s(sE1), s(so), (uu+hstride)*65536))
            L.append(E("buffer_store_dwordx4", v(T,4), v(vL16), s(sWS,4), s(sE0), mods="offen"+stm, tag="st"))
            L.append(E("buffer_store_dwordx4", v(T+4,4), v(vL16), s(sWS,4), s(sE1), mods="offen"+stm, tag="st"))
            na, nb_ = T+8, T+9
            L.append(E("v_mov_b32", v(na), 0)); L.append(E("v_mov_b32", v(nb_), 0))
            for i in range(4):
                L.append(E("v_dot2_f32_bf16", v(na), v(T+i), v(T+i), v(na)))
                L.append(E("v_dot2_f32_bf16", v(nb_), v(T+4+i), v(T+4+i), v(nb_)))
            L.append(E("s_nop", 2))
            L.append(E("v_permlane32_swap_b32", v(na), v(nb_)))
            L.append(E("s_nop", 1))
            L.append(E("v_add_f32", v(na), v(na), v(nb_)))
            for mod in ("quad_perm:[1,0,3,2]", "quad_perm:[2,3,0,1]", "row_half_mirror", "row_mirror"):
                L.append(E("s_nop", 1))
                L.append(E("v_max_f32_dpp", v(na), v(na), v(na), mods=f"{mod} row_mask:0xf bank_mask:0xf"))
            L.append(E("v_mov_b32", v(nb_), v(na)))
            L.append(E("s_nop", 1))
            L.append(E("v_permlane16_swap_b32", v(na), v(nb_)))
            L.append(E("s_nop", 1))
            L.append(E("v_max_f32", v(na), v(na), v(nb_)))
            L.append(E("s_add_u32", s(sE0), s(sKMo), uu*256 + WS_KM + (0x2000 if is_q else 0)))
            L.append(E("buffer_store_dword", v(na), v(vKM), s(sWS,4), s(sE0), mods="offen"+stm, tag="st"))
        return L
    def epi_v(tiles, so):
        L = []
        for (tb, uu) in tiles:
            for i in range(8):
                L.append(E("v_cvt_pk_bf16_f32", v(T+i), v(tb+2*i), v(tb+2*i+1)))
            L.append(E("s_add_u32", s(sE0), s(so), uu*65536))
            L.append(E("buffer_store_dwordx4", v(T,4), v(vVst), s(sWS,4), s(sE0), mods="offen"+stm, tag="st"))
            L.append(E("buffer_store_dwordx4", v(T+4,4), v(vVst), s(sWS,4), s(sE0), mods="offen offset:512"+stm, tag="st"))
            L.append(E("s_nop", 0))
        return L

    def run_all(L, vmx):
        for f in L: f(vmx)

    def rd_q4(n, ks, buf):
        slot = n % NSLOT
        grp = slot // 3
        base = (slot % 3)*16384 + ks*2048
        for uu in range(2):
            for j in range(2):
                A.e("ds_read_b64_tr_b16", v(FB[buf] + 4*uu + 2*j, 2), v(vWR[grp][uu]), mods=f"offset:{base + j*512}")
    def rd_s1(n, ks, buf):
        slot = n % NSLOT
        grp = slot // 3
        base = (slot % 3)*16384 + ks*512
        for j in range(2):
            A.e("ds_read_b64_tr_b16", v(FB[buf] + 2*j, 2), v(vS1[grp][j]), mods=f"offset:{base}")

    def item_q4(n0, acc, swapped, fill, vmx, prefetch, next_rd, hooks=None):
        nonlocal vm
        vm = vmx
        fill = list(fill); fi = 0
        nks = 32
        for c in range(8):
            n = n0 + c
            w = vmx.after(("w", n+1))
            if w is not None: A.e("s_waitcnt", f"vmcnt({min(w,63)})")
            A.e("s_barrier")
            prefetch(n + 5)
            if hooks and c in hooks: hooks[c](vmx)
            for ks in range(4):
                kk = 4*c + ks
                buf = kk % 2
                nrd = 4
                if ks < 3: rd_q4(n, ks+1, 1-buf)
                elif c < 7: rd_q4(n+1, 0, 1-buf)
                else: nrd = next_rd(1-buf)
                A.e("s_waitcnt", f"lgkmcnt({nrd})")
                for uu in range(2):
                    d = v(acc + 16*uu, 16); wf = v(FB[buf] + 4*uu, 4); xf = v(XF + 4*kk, 4)
                    cc = 0 if kk == 0 else d
                    if swapped: A.e("v_mfma_f32_32x32x16_bf16", d, xf, wf, cc)
                    else: A.e("v_mfma_f32_32x32x16_bf16", d, wf, xf, cc)
                    if kk >= 1:
                        slots_left = (nks - kk)*2 - uu
                        k = -(-(len(fill) - fi) // slots_left)
                        for _ in range(k):
                            if fi < len(fill): fill[fi](vmx); fi += 1
        while fi < len(fill): fill[fi](vmx); fi += 1

    def item_s1(n0, acc, swapped, fill, vmx, lbl):
        nonlocal vm
        vm = vmx
        l1 = f"{lbl}_c1"; l2 = f"{lbl}_cj"
        v0 = vmx.clone()
        A.e("s_cmp_eq_u32", s(sCh), 0)
        A.e("s_cbranch_scc0", l1)
        fl = list(fill); fi = 0
        for c in range(2):
            n = n0 + c
            w = v0.after(("w", n+1))
            if w is not None: A.e("s_waitcnt", f"vmcnt({min(w,63)})")
            A.e("s_barrier")
            for ks in range(16):
                kk = 16*c + ks
                buf = kk % 2
                nrd = 2
                if ks < 15: rd_s1(n, ks+1, 1-buf)
                elif c == 0: rd_s1(n+1, 0, 1-buf)
                else: nrd = 0
                A.e("s_waitcnt", f"lgkmcnt({nrd})")
                d = v(acc, 16); wf = v(FB[buf], 4); xf = v(XF + 4*kk, 4)
                cc = 0 if kk == 0 else d
                if swapped: A.e("v_mfma_f32_32x32x16_bf16", d, xf, wf, cc)
                else: A.e("v_mfma_f32_32x32x16_bf16", d, wf, xf, cc)
                if kk >= 1:
                    k = -(-(len(fl) - fi) // (32 - kk))
                    for _ in range(k):
                        if fi < len(fl): fl[fi](v0); fi += 1
        while fi < len(fl): fl[fi](v0); fi += 1
        A.e("s_branch", l2)
        A.label(l1)
        v1 = vmx.clone()
        for c in range(2):
            n = n0 + c
            w = v1.after(("w", n+1))
            if w is not None: A.e("s_waitcnt", f"vmcnt({min(w,63)})")
            A.e("s_barrier")
            if c == 0:
                A.e("s_nop", 7); A.e("s_nop", 7)
                run_all(fill, v1)
        A.e("s_waitcnt", "vmcnt(0)")
        A.e("s_endpgm")
        A.label(l2)
        return v0

    def dma_s1(n, first):
        slot = RING + (n % NSLOT)*16384
        A.e("s_lshl_b32", s(sT0), s(sW), 10)
        A.e("s_add_u32", "m0", s(sT0), slot)
        A.e("s_add_u32", s(sT1), s(sT0), slot + 8192)
        A.e("buffer_load_dwordx4", v(vSA), s(sA,4), s(sOffA), mods="offen lds")
        A.e("s_mov_b32", "m0", s(sT1))
        A.e("s_add_u32", s(sOffA), s(sOffA), s(sStr))
        A.e("buffer_load_dwordx4", v(vSB), s(sB,4), s(sOffB), mods="offen lds")
        A.e("s_add_u32", s(sOffB), s(sOffB), s(sStr))
        vm.add(("w", n)); vm.add(("w", n))

    def s1_voffsets(stride):
        A.e("v_and_b32", v(T+13), 63, "v0")
        A.e("v_lshrrev_b32", v(T+14), 1, v(T+13))
        A.e("s_lshl_b32", s(sT0), s(sW), 5)
        A.e("v_add_u32", v(T+14), s(sT0), v(T+14))
        A.e("v_and_b32", v(T+13), 1, v(T+13))
        A.e("v_lshlrev_b32", v(T+13), 4, v(T+13))
        A.e("s_mov_b32", s(sT0), stride)
        A.e("v_mul_lo_u32", v(T+15), v(T+14), s(sT0))
        A.e("v_add_u32", v(vSA), v(T+15), v(T+13))
        A.e("v_xor_b32", v(T+14), 4, v(T+14))
        A.e("v_mul_lo_u32", v(T+15), v(T+14), s(sT0))
        A.e("v_add_u32", v(vSB), v(T+15), v(T+13))

    def km_voffset(hstride):
        A.e("v_and_b32", v(T+13), 63, "v0")
        A.e("v_lshrrev_b32", v(T+13), 5, v(T+13))
        A.e("v_mul_u32_u24", v(vKM), hstride*256, v(T+13))

    def pf_item0(n):
        if n == 8:
            la = A.uid(name+"_sw"); lb = A.uid(name+"_swd")
            A.e("s_mov_b32", s(sOffA), s(sNA)); A.e("s_mov_b32", s(sOffB), s(sNB))
            A.e("s_cmp_lt_u32", s(sCg), 5)
            A.e("s_cbranch_scc1", lb)
            srd(sA, pQKV, D*3*D*2); srd(sB, pQKV, D*3*D*2)
            A.e("s_mov_b32", s(sStr), 64*3072)
            A.e("v_and_b32", v(lane), 63, "v0")
            q4_voffsets_keep(3072)
            A.label(lb)
        dma_q4(n)
    def q4_voffsets_keep(stride):
        a, b, c_ = T+13, T+14, T+15
        A.e("v_lshrrev_b32", v(a), 3, v(lane))
        A.e("s_lshl_b32", s(sT0), s(sW), 3)
        A.e("v_add_u32", v(a), s(sT0), v(a))
        A.e("s_mov_b32", s(sT0), stride)
        A.e("v_mul_lo_u32", v(a), v(a), s(sT0))
        A.e("v_lshrrev_b32", v(b), 4, v(lane))
        A.e("v_and_b32", v(b), 1, v(b))
        A.e("v_lshlrev_b32", v(b), 5, v(b))
        A.e("v_and_b32", v(c_), 7, v(lane))
        A.e("v_lshlrev_b32", v(c_), 4, v(c_))
        A.e("v_xor_b32", v(c_), v(b), v(c_))
        A.e("v_add_u32", v(vWA), v(a), v(c_))
        A.e("v_xor_b32", v(c_), 64, v(c_))
        A.e("v_add_u32", v(vWB), v(a), v(c_))
    def hook_tr_load(vmx):
        A.e("v_and_b32", v(T+13), 63, "v0")
        A.e("v_lshrrev_b32", v(T+14), 5, v(T+13))
        A.e("s_lshl_b32", s(sT0), s(sW), 1)
        A.e("v_add_u32", v(T+14), s(sT0), v(T+14))
        A.e("v_lshlrev_b32", v(T+14), 10, v(T+14))
        A.e("v_and_b32", v(T+13), 31, v(T+13))
        A.e("v_lshlrev_b32", v(T+13), 4, v(T+13))
        A.e("v_add_u32", v(T+14), v(T+14), v(T+13))
        A.e("s_lshl_b32", "m0", s(sW), 10)
        A.e("s_nop", 0)
        A.e("buffer_load_dwordx4", v(T+14), s(sTr,4), s(sTrS), mods="offen lds")
        vmx.add("tr")
    def hook_tr_wait(vmx):
        pass
    def hook_tr_do(vmx):
        A.e("ds_read_b64_tr_b16", v(T+20,2), v(vTr), mods="offset:0")
        A.e("ds_read_b64_tr_b16", v(T+22,2), v(vTr), mods="offset:4096")
        A.e("s_waitcnt", "lgkmcnt(0)")
        A.e("buffer_store_dwordx4", v(T+20,4), v(vL16), s(sWS,4), s(sTrD), mods="offen"+stm)
        vmx.add("st")
    A.e("s_waitcnt", f"vmcnt({vm.after(('w',1))}) lgkmcnt(0)")
    A.e("s_barrier")
    rd_q4(0, 0, 0)
    item_q4(0, ACC[0], False, [], vm, pf_item0, lambda buf: (rd_q4(8, 0, buf), 4)[1], hooks={0: hook_tr_load, 7: hook_tr_do})
    vm_after0 = vm
    if prof: A.e("s_memtime", s(82,2))
    gu0 = epi_gu(ACC[0], [(ACC[0], sO1, 0), (ACC[0]+16, sO1, 1024)])

    L_ns = f"{name}_nS"; L_nn = f"{name}_nN"; L_v = f"{name}_V"
    A.e("s_cmp_ge_u32", s(sCg), 13)
    A.e("s_cbranch_scc1", L_v)
    A.e("s_cmp_lt_u32", s(sCg), 4)
    A.e("s_cbranch_scc1", L_ns)
    A.e("s_sub_u32", s(sT0), s(sCg), 5)
    A.e("s_cmp_lt_u32", s(sT0), 2)
    A.e("s_cbranch_scc1", L_ns)
    A.label(L_nn)
    vmx = vm_after0.clone()
    item_q4(8, ACC[1], False, gu0, vmx, lambda n: (dma_q4(n) if n < 16 else None), lambda buf: 0)
    A.e("s_nop", 15)
    lq = A.uid(name+"_tq"); lk = A.uid(name+"_tk")
    A.e("s_cmp_eq_u32", s(sCg), 4)
    A.e("s_cbranch_scc0", lq)
    run_all(epi_gu(ACC[1], [(ACC[1], sO2, 0), (ACC[1]+16, sO2, 1024)]), vmx.clone())
    A.e("s_branch", f"{name}_done")
    A.label(lq)
    km_voffset(4)
    A.e("s_cmp_lt_u32", s(sCg), 9)
    A.e("s_cbranch_scc0", lk)
    run_all(epi_qk([(ACC[1], 0), (ACC[1]+16, 1)], sO2, True, 4), vmx.clone())
    A.e("s_branch", f"{name}_done")
    A.label(lk)
    run_all(epi_qk([(ACC[1], 0), (ACC[1]+16, 1)], sO2, False, 4), vmx.clone())
    A.e("s_branch", f"{name}_done")
    A.label(L_v)
    vmx = vm_after0.clone()
    v_voffset(4)
    item_q4(8, ACC[1], True, gu0, vmx, lambda n: (dma_q4(n) if n < 16 else None), lambda buf: 0)
    A.e("s_nop", 15)
    run_all(epi_v([(ACC[1], 0), (ACC[1]+16, 1)], sO2), vmx)
    A.e("s_branch", f"{name}_done")
    A.label(L_ns)
    vmx = vm_after0.clone()
    def pf_item1(n):
        if n < 16: dma_q4(n)
        elif n == 16:
            la = A.uid(name+"_s1g"); lb = A.uid(name+"_s1d")
            A.e("s_cmp_lt_u32", s(sCg), 4)
            A.e("s_cbranch_scc0", la)
            srd(sA, pQKV, D*3*D*2); srd(sB, pQKV, D*3*D*2)
            A.e("s_lshl_b32", s(sOffA), s(sCg), 6)
            A.e("s_add_u32", s(sOffA), s(sOffA), 1408*2)
            A.e("s_add_u32", s(sOffB), s(sOffA), 32)
            A.e("s_mov_b32", s(sStr), 256*3072)
            s1_voffsets(3072)
            A.e("s_branch", lb)
            A.label(la)
            srd(sA, pW1, D*F*2); srd(sB, pW3, D*F*2)
            A.e("s_sub_u32", s(sOffA), s(sCg), 5)
            A.e("s_lshl_b32", s(sOffA), s(sOffA), 5)
            A.e("s_add_u32", s(sOffA), s(sOffA), 1344*2)
            A.e("s_mov_b32", s(sOffB), s(sOffA))
            A.e("s_mov_b32", s(sStr), 256*2752)
            s1_voffsets(2752)
            A.label(lb)
            dma_s1(16, True)
        elif n == 17: dma_s1(17, False)
    def s1_first(buf):
        rd_s1(16, 0, buf); return 2
    item_q4(8, ACC[1], False, gu0, vmx, pf_item1, s1_first)
    lg = A.uid(name+"_pg")
    A.e("s_cmp_lt_u32", s(sCg), 4)
    A.e("s_cbranch_scc0", lg)
    v_voffset(1)
    vy = item_s1(16, ACC[0], True, epi_gu(ACC[1], [(ACC[1], sO2, 0), (ACC[1]+16, sO2, 1024)]), vmx.clone(), f"{name}_s1v")
    A.e("s_nop", 15)
    run_all(epi_v([(ACC[0], 0)], sO3), vy)
    A.e("s_branch", f"{name}_done")
    A.label(lg)
    km_voffset(4)
    vy = item_s1(16, ACC[0], False, epi_qk([(ACC[1], 0), (ACC[1]+16, 1)], sO2, True, 4), vmx.clone(), f"{name}_s1g")
    A.e("s_nop", 15)
    run_all(epi_gu(ACC[0], [(ACC[0], sO3, 0)]), vy)
    A.label(f"{name}_done")
    if prof:
        A.e("s_memtime", s(70,2)); A.e("s_memrealtime", s(72,2)); A.e("s_waitcnt", "lgkmcnt(0)")
        A.e("s_lshl_b32", "s74", "s2", 3); A.e("s_add_u32", "s74", "s74", s(sW)); A.e("s_lshl_b32", "s74", "s74", 5)
        A.e("s_add_u32", "s74", "s74", PROF1)
        A.e("v_mov_b32", v(T), "s64"); A.e("v_mov_b32", v(T+1), "s68"); A.e("v_mov_b32", v(T+2), "s70"); A.e("v_mov_b32", v(T+3), "s66")
        A.e("v_mov_b32", v(T+4), 0); A.e("v_mov_b32", v(T+6), "s72")
        A.e("v_mov_b32", v(T+7), "s78"); A.e("v_mov_b32", v(T+8), "s80"); A.e("v_mov_b32", v(T+9), "s82")
        A.e("buffer_store_dwordx4", v(T+6,4), v(T+4), s(sWS,4), "s74", mods="offen offset:16")
        A.e("buffer_store_dwordx4", v(T,4), v(T+4), s(sWS,4), "s74", mods="offen")
    A.e("s_waitcnt", "vmcnt(0)")
    A.label(f"{name}_exit")
    A.e("s_endpgm")
    kd = KD.format(name=name, vgpr=256, sgpr=96, acc=256)
    return A.text(), kd
```

```python
from asmlib import *
from layout import *
import struct

T_BOUND = 40.0
K2_LDS = 147456
PROF_OFF = 0x1700000
def f32hex(x):
    return "0x%08x" % struct.unpack("<I", struct.pack("<f", x))[0]

SCHED = "WQkeeeeexAveeeccccee" + "Bweeeyeeeucccc"

def gen_k2(name, prof=False, sched=SCHED, var="", st="", NB=6, opat=None, ypat=None):
    A = Asm()
    U = 8
    vK, vV, vVinc, vL16 = 2, 3, 4, 5
    S0, S1, P, O, C, Q = 16, 32, 48, 56, 72, 88
    KB = [92, 96]
    VB = [[100, 104], [108, 112]]
    SS = [S0, S1]
    G = 116
    GB = [132 + 8*i for i in range(NB)]
    sWS = 8
    sHead, sQb, sW, sRb = 12, 13, 14, 15
    sKoff, sVoff, sIt, sM0, sFb = 16, 17, 19, 20, 18
    sH, sW2, sG, sDP = 28, 32, 36, 37
    stm = (" " + st) if st else ""
    A(f".globl {name}\n.p2align 8\n.type {name},@function\n{name}:")
    A.e("s_cmp_ge_u32", "s2", 256)
    A.e("s_cbranch_scc1", f"{name}_exit")
    A.e("s_load_dwordx2", s(4,2), s(0,2), KA_WS)
    if prof:
        A.e("s_memtime", s(40,2)); A.e("s_memrealtime", s(42,2))
    A.e("s_and_b32", "s3", "s2", 7)
    A.e("s_lshr_b32", "s6", "s2", 3)
    A.e("s_and_b32", "s7", "s6", 3)
    A.e("s_lshl_b32", "s21", "s3", 2)
    A.e("s_add_u32", s(sHead), "s21", "s7")
    A.e("s_lshr_b32", s(sQb), "s6", 2)
    A.e("v_lshrrev_b32", "v1", 6, "v0")
    A.e("v_and_b32", "v6", 63, "v0")
    A.e("v_readfirstlane_b32", s(sW), "v1")
    A.e("v_lshlrev_b32", v(vL16), 4, "v6")
    A.e("s_lshr_b32", "s22", "s6", 3)
    A.e("s_add_u32", "s21", "s21", "s22")
    A.e("s_and_b32", "s22", "s6", 7)
    A.e("s_waitcnt", "lgkmcnt(0)")
    A.e("s_mov_b32", s(sWS), "s4")
    A.e("s_mov_b32", s(sWS+1), "s5")
    A.e("s_mov_b32", s(sWS+2), WS_END)
    A.e("s_mov_b32", s(sWS+3), "0x20000")
    A.e("s_lshl_b32", "s21", "s21", 1)
    A.e("s_lshr_b32", "s23", s(sW), 1)
    A.e("s_and_b32", "s23", "s23", 1)
    A.e("s_add_u32", "s21", "s21", "s23")
    A.e("s_lshl_b32", "s22", "s22", 1)
    A.e("s_and_b32", "s23", s(sW), 1)
    A.e("s_add_u32", "s22", "s22", "s23")
    A.e("s_mul_i32", "s23", "s21", NFS*1024)
    A.e("s_add_u32", "s23", "s23", WS_HF)
    A.e("s_add_u32", s(sH), "s4", "s23")
    A.e("s_addc_u32", s(sH+1), "s5", 0)
    A.e("s_mov_b32", s(sH+2), NFS*1024)
    A.e("s_mov_b32", s(sH+3), "0x20000")
    A.e("s_mul_i32", "s23", "s22", NFS*1024)
    A.e("s_add_u32", "s23", "s23", WS_W2F)
    A.e("s_add_u32", s(sW2), "s4", "s23")
    A.e("s_addc_u32", s(sW2+1), "s5", 0)
    A.e("s_mov_b32", s(sW2+2), NFS*1024)
    A.e("s_mov_b32", s(sW2+3), "0x20000")
    A.e("s_lshl_b32", "s21", "s21", 4)
    A.e("s_add_u32", "s21", "s21", "s22")
    A.e("s_lshl_b32", "s21", "s21", 12)
    A.e("s_add_u32", s(sDP), "s21", WS_DP)
    A.e("s_mov_b32", s(sG), 0)
    A.e("s_lshl_b32", s(sRb), s(sQb), 3)
    A.e("s_add_u32", s(sRb), s(sRb), s(sW))
    A.e("s_lshl_b32", "s21", s(sHead), 16)
    A.e("s_lshl_b32", "s22", s(sRb), 10)
    A.e("s_add_u32", "s23", "s21", "s22")
    A.e("s_add_u32", "s23", "s23", WS_QF)
    A.e("buffer_load_dwordx4", v(Q,4), v(vL16), s(sWS,4), "s23", mods="offen")
    A.e("v_lshlrev_b32", "v7", 2, "v6")
    A.e("s_lshl_b32", "s24", s(sHead), 8)
    A.e("s_add_u32", "s24", "s24", WS_KM)
    A.e("buffer_load_dword", "v8", "v7", s(sWS,4), "s24", mods="offen")
    A.e("s_add_u32", "s24", "s24", 0x2000)
    A.e("buffer_load_dword", "v9", "v7", s(sWS,4), "s24", mods="offen")
    A.e("s_lshl_b32", "s22", s(sW), 10)
    A.e("s_add_u32", s(sKoff), "s21", "s22")
    A.e("s_add_u32", s(sVoff), s(sKoff), WS_VF)
    A.e("s_add_u32", s(sKoff), s(sKoff), WS_KF)
    A.e("s_mov_b32", s(sM0), "s22")
    def dma(m0reg_or_val, off):
        A.e("s_mov_b32", "m0", m0reg_or_val)
        A.e("s_nop", 0)
        A.e("buffer_load_dwordx4", v(vL16), s(sWS,4), off, mods="offen lds")
    for c in range(2):
        A.e("s_add_u32", "s25", s(sM0), c*8192)
        A.e("s_add_u32", "s26", s(sKoff), c*8192)
        dma("s25", "s26")
        A.e("s_add_u32", "s25", s(sM0), 65536 + c*8192)
        A.e("s_add_u32", "s26", s(sVoff), c*8192)
        dma("s25", "s26")
    A.e("v_lshlrev_b32", "v10", 4, "v0")
    A.e("v_add_u32", "v10", 131072, "v10")
    A.e("v_and_b32", "v11", 2, "v0")
    A.e("v_cmp_eq_u32", "vcc", 0, "v11")
    A.e("v_mov_b32", "v13", "0x3f803f80")
    A.e("v_mov_b32", "v14", 0)
    A.e("v_cndmask_b32", "v12", "v14", "v13", "vcc")
    A.e("v_mov_b32", v(vK), v(vL16))
    A.e("v_mov_b32", "v13", "v12"); A.e("v_mov_b32", "v14", "v12"); A.e("v_mov_b32", "v15", "v12")
    A.e("ds_write_b128", "v10", v(12,4))
    A.e("ds_write_b128", "v10", v(12,4), mods="offset:8192")
    A.e("v_and_b32", "v10", 31, "v6")
    A.e("v_lshrrev_b32", "v11", 5, "v6")
    A.e("v_lshlrev_b32", "v11", 8, "v11")
    A.e("v_lshlrev_b32", "v12", 4, "v10")
    A.e("v_add_u32", "v11", "v11", "v12")
    A.e("v_add_u32", "v11", 65536, "v11")
    A.e("v_subrev_u32", "v12", 20, "v10")
    A.e("v_cmp_gt_u32", "vcc", 8, "v12")
    A.e("v_mov_b32", "v13", 131072)
    A.e("v_mov_b32", "v14", 131072+64)
    A.e("v_cndmask_b32", "v13", "v13", "v14", "vcc")
    A.e("v_and_b32", "v14", 27, "v10")
    A.e("v_cmp_eq_u32", "vcc", 16, "v14")
    A.e("v_add_u32", "v14", 32, "v13")
    A.e("s_nop", 0)
    A.e("v_cndmask_b32", "v13", "v14", "v13", "vcc")
    A.e("v_cmp_gt_u32", "vcc", 16, "v10")
    A.e("v_mov_b32", "v14", U*1024)
    A.e("v_mov_b32", "v15", 0)
    A.e("v_cndmask_b32", v(vV), "v13", "v11", "vcc")
    A.e("v_cndmask_b32", v(vVinc), "v15", "v14", "vcc")
    for i in range(16):
        A.e("v_mov_b32", v(O+i), 0)
    for i in range(4,8):
        A.e("v_mov_b32", v(P+i), 0)
    A.e("s_waitcnt", "vmcnt(4)")
    A.e("v_lshrrev_b32", "v10", 3, "v6")
    A.e("v_cmp_eq_u32", "vcc", s(sQb), "v10")
    A.e("v_mov_b32", "v15", 0)
    A.e("v_mov_b32", "v12", 0)
    A.e("v_cndmask_b32", "v9", "v15", "v9", "vcc")
    for i in range(4):
        A.e("v_dot2_f32_bf16", "v12", v(Q+i), v(Q+i), "v12")
    for mod in ("quad_perm:[1,0,3,2]", "quad_perm:[2,3,0,1]", "row_half_mirror", "row_mirror"):
        A.e("v_max_f32_dpp", "v8", "v8", "v8", mods=f"{mod} row_mask:0xf bank_mask:0xf")
        A.e("v_max_f32_dpp", "v9", "v9", "v9", mods=f"{mod} row_mask:0xf bank_mask:0xf")
        A.e("s_nop", 0)
    A.e("v_mov_b32", "v10", "v8"); A.e("v_mov_b32", "v11", "v9"); A.e("v_mov_b32", "v13", "v12")
    A.e("s_nop", 0)
    A.e("v_permlane16_swap_b32", "v8", "v10")
    A.e("v_permlane16_swap_b32", "v9", "v11")
    A.e("v_permlane32_swap_b32", "v12", "v13")
    A.e("s_nop", 0)
    A.e("v_max_f32", "v8", "v8", "v10")
    A.e("v_max_f32", "v9", "v9", "v11")
    A.e("v_add_f32", "v12", "v12", "v13")
    A.e("v_mov_b32", "v10", "v8"); A.e("v_mov_b32", "v11", "v9")
    A.e("s_nop", 1)
    A.e("v_permlane32_swap_b32", "v8", "v10")
    A.e("v_permlane32_swap_b32", "v9", "v11")
    A.e("s_nop", 1)
    A.e("v_max_f32", "v8", "v8", "v10")
    A.e("v_max_f32", "v9", "v9", "v11")
    A.e("v_mul_f32", "v12", "v12", "v8")
    A.e("v_mul_f32", "v9", "v9", "v8")
    A.e("v_sqrt_f32", "v12", "v12")
    A.e("s_mov_b32", "s25", f32hex(T_BOUND*T_BOUND))
    A.e("v_cmp_nle_f32", "vcc", "v9", "s25")
    A.e("v_mul_f32", "v10", f32hex(-1.01), "v12")
    for i in range(16):
        A.e("v_mov_b32", v(C+i), "v10")
    A.e("s_cmp_lg_u64", "vcc", 0)
    A.e("s_cbranch_scc0", f"{name}_fast")
    for c in range(2, 8):
        A.e("s_add_u32", "s25", s(sM0), c*8192)
        A.e("s_add_u32", "s26", s(sKoff), c*8192)
        dma("s25", "s26")
        A.e("s_add_u32", "s25", s(sM0), 65536 + c*8192)
        A.e("s_add_u32", "s26", s(sVoff), c*8192)
        dma("s25", "s26")
    A.e("s_waitcnt", "vmcnt(0) lgkmcnt(0)")
    A.e("s_barrier")
    A.e("v_mov_b32", "v10", "0xff800000")
    A.e("v_mov_b32", "v11", v(vL16))
    A.e("s_mov_b32", s(sIt), 64)
    A.label(f"{name}_mx")
    A.e("ds_read_b128", v(KB[0],4), "v11")
    A.e("v_add_u32", "v11", 1024, "v11")
    A.e("s_waitcnt", "lgkmcnt(0)")
    A.e("v_mfma_f32_32x32x16_bf16", v(S0,16), v(KB[0],4), v(Q,4), 0)
    A.e("s_nop", 15)
    A.e("s_nop", 3)
    for i in range(8):
        A.e("v_max3_f32", "v10", v(S0+2*i), v(S0+2*i+1), "v10")
    A.e("s_sub_u32", s(sIt), s(sIt), 1)
    A.e("s_cmp_lg_u32", s(sIt), 0)
    A.e("s_cbranch_scc1", f"{name}_mx")
    A.e("v_mov_b32", "v11", "v10")
    A.e("s_nop", 1)
    A.e("v_permlane32_swap_b32", "v10", "v11")
    A.e("s_nop", 1)
    A.e("v_max_f32", "v10", "v10", "v11")
    A.e("v_sub_f32", "v10", 0, "v10")
    for i in range(16):
        A.e("v_mov_b32", v(C+i), "v10")
    A.label(f"{name}_fast")
    A.e("s_waitcnt", "vmcnt(0) lgkmcnt(0)")
    A.e("s_barrier")
    A.e("ds_read_b128", v(KB[0],4), v(vK), mods="offset:0")
    A.e("ds_read_b128", v(KB[1],4), v(vK), mods="offset:1024")
    A.e("ds_read_b128", v(VB[0][0],4), v(vV), mods="offset:0")
    A.e("ds_read_b128", v(VB[1][1],4), v(vV), mods="offset:512")
    A.e("s_waitcnt", "lgkmcnt(3)")
    A.e("v_mfma_f32_32x32x16_bf16", v(S0,16), v(KB[0],4), v(Q,4), v(C,16))
    A.e("s_mov_b32", s(sIt), 7)
    A.e("s_waitcnt", "lgkmcnt(0)")
    if prof:
        A.e("s_memtime", s(44,2)); A.e("s_waitcnt", "lgkmcnt(0)")
    A.e("s_nop", 7)

    def tile(tt, x=None, y=None):
        cur, nxt = SS[tt % 2], SS[(tt+1) % 2]
        vb, vn = VB[tt % 2], VB[(tt+1) % 2]
        ie = ic = 0
        for ch in sched:
            if ch == 'e':
                A.e("v_exp_f32", v(cur+ie), v(cur+ie)); ie += 1
            elif ch == 'c':
                A.e("v_cvt_pk_bf16_f32", v(P+ic), v(cur+2*ic), v(cur+2*ic+1)); ic += 1
            elif ch == 'Q':
                A.e("v_mfma_f32_32x32x16_bf16", v(nxt,16), v(KB[(tt+1)%2],4), v(Q,4), v(C,16))
            elif ch == 'A':
                A.e("v_mfma_f32_32x32x16_bf16", v(O,16), v(vn[1],4), v(P+4,4), v(O,16))
            elif ch == 'B':
                A.e("v_mfma_f32_32x32x16_bf16", v(O,16), v(vb[0],4), v(P,4), v(O,16))
            elif ch == 'k':
                A.e("ds_read_b128", v(KB[tt%2],4), v(vK), mods=f"offset:{(tt+2)*1024}")
            elif ch == 'v':
                A.e("ds_read_b128", v(vn[0],4), v(vV), mods=f"offset:{(2*(tt+1))*512}")
            elif ch == 'w':
                A.e("ds_read_b128", v(vb[1],4), v(vV), mods=f"offset:{(2*tt+1)*512}")
            elif ch == 'W':
                A.e("s_waitcnt", "lgkmcnt(0)")
            elif ch == 'x':
                if x: x()
            elif ch == 'y':
                if y: y()
            elif ch == 'u':
                if tt == U-1:
                    A.e("v_add_u32", v(vK), U*1024, v(vK))
                    A.e("v_add_u32", v(vV), v(vVinc), v(vV))
        assert ie == 16 and ic == 8

    def loop_top(lbl):
        A(".p2align 6")
        A.label(lbl)
        nb = A.uid(name + "_nb")
        A.e("s_cmp_ge_u32", s(sIt), 6)
        A.e("s_cbranch_scc0", nb)
        A.e("s_barrier")
        A.label(nb)
    def loop_end(lbl):
        A.e("s_sub_u32", s(sIt), s(sIt), 1)
        A.e("s_cmp_lg_u32", s(sIt), 0)
        A.e("s_cbranch_scc1", lbl)
    def attn_epilogue():
        A.e("s_waitcnt", "lgkmcnt(0)")
        A.e("v_mfma_f32_32x32x16_bf16", v(O,16), v(VB[1][1],4), v(P+4,4), v(O,16))
        if prof:
            A.e("s_memtime", s(46,2)); A.e("s_memrealtime", s(48,2)); A.e("s_waitcnt", "lgkmcnt(0)")
            A.e("s_lshl_b32", "s50", "s2", 3); A.e("s_add_u32", "s50", "s50", s(sW)); A.e("s_lshl_b32", "s50", "s50", 5)
            A.e("s_add_u32", "s50", "s50", PROF_OFF)
            A.e("v_mov_b32", "v12", "s40"); A.e("v_mov_b32", "v13", "s44"); A.e("v_mov_b32", "v14", "s46"); A.e("v_mov_b32", "v15", "s42")
            A.e("v_mov_b32", "v11", 0)
            A.e("v_mov_b32", "v10", "s48")
            A.e("buffer_store_dword", "v10", "v11", "s[52:55]", "s50", mods="offen offset:16")
            A.e("buffer_store_dwordx4", v(12,4), "v11", "s[52:55]", "s50", mods="offen")
        A.e("s_lshl_b32", "s21", s(sRb), 15)
        A.e("s_lshl_b32", "s22", s(sHead), 10)
        A.e("s_add_u32", "s21", "s21", "s22")
        A.e("s_add_u32", "s21", "s21", WS_OF)
        A.e("s_nop", 15)
        A.e("v_rcp_f32", "v10", v(O+8))
        A.e("s_nop", 0)
        for i in range(8):
            A.e("v_mul_f32", v(O+i), "v10", v(O+i))
        for i in range(4):
            A.e("v_cvt_pk_bf16_f32", v(P+i), v(O+2*i), v(O+2*i+1))
        A.e("buffer_store_dwordx4", v(P,4), v(vL16), s(sWS,4), "s21", mods="offen"+stm)
    if prof:
        A.e("s_mov_b32", "s52", "s4"); A.e("s_mov_b32", "s53", "s5"); A.e("s_mov_b32", "s54", 0x1800000); A.e("s_mov_b32", "s55", "0x20000")

    A.e("s_cmp_ge_u32", s(sW), 4)
    A.e("s_cbranch_scc1", f"{name}_young")
    vm = []
    def gload(step):
        b = GB[step % NB]
        A.e("buffer_load_dwordx4", v(b,4), v(vL16), s(sW2,4), s(sG), mods="offen")
        A.e("buffer_load_dwordx4", v(b+4,4), v(vL16), s(sH,4), s(sG), mods="offen")
        A.e("s_add_u32", s(sG), s(sG), 1024)
        vm.extend([("g", step)]*2)
    def gstep(step, n_after, first=False):
        b = GB[step % NB]
        A.e("s_waitcnt", f"vmcnt({n_after})")
        A.e("v_mfma_f32_32x32x16_bf16", v(G,16), v(b,4), v(b+4,4), 0 if first else v(G,16))
    def chunk_old(c):
        for pc in range(2):
            A.e("s_add_u32", "s25", s(sM0), c*8192 + pc*4096)
            A.e("s_add_u32", "s26", s(sKoff), c*8192 + pc*4096)
            dma("s25", "s26")
        for pc in range(2):
            A.e("s_add_u32", "s25", s(sM0), 65536 + c*8192 + pc*4096)
            A.e("s_add_u32", "s26", s(sVoff), c*8192 + pc*4096)
            dma("s25", "s26")
        vm.extend([("c", c)]*4)
    def after(kind, idx):
        last = max(i for i, o in enumerate(vm) if o == (kind, idx))
        return len(vm) - 1 - last
    per = NB // 6
    def peel_x(tt):
        def f():
            if tt < 6: chunk_old(tt + 2)
            if tt == 6: gstep(0, after("g", 0), first=True); gload(NB)
            if tt == 7: gstep(1, after("g", 1)); gload(NB+1)
        return f
    def peel_y(tt):
        def f():
            if tt < 6:
                for q in range(per): gload(tt*per + q)
        return f
    for tt in range(U):
        if opat: A.e("s_setprio", opat[tt])
        tile(tt, x=peel_x(tt), y=peel_y(tt))
    n3 = after("c", 3)
    A.e("s_waitcnt", f"vmcnt({min(n3,63)})")
    loop_top(f"{name}_oloop")
    for tt in range(U):
        i0 = (tt // 2) * 3 + (tt % 2) * 2
        def mk(i):
            def f():
                gstep(2 + i, 2*NB - 2)
                gload(2 + i)
            return f
        if opat and (tt == 0 or opat[tt] != opat[tt-1]): A.e("s_setprio", opat[tt])
        tile(tt, x=mk(i0), y=(mk(i0+1) if tt % 2 == 0 else None))
    loop_end(f"{name}_oloop")
    attn_epilogue()
    for g in range(4):
        A.e("buffer_store_dwordx4", v(G+4*g,4), v(vL16), s(sWS,4), s(sDP), mods=f"offen offset:{g*1024}"+stm)
    A.e("s_waitcnt", "vmcnt(0)")
    A.e("s_endpgm")
    A.label(f"{name}_young")
    if ypat is not None: A.e("s_setprio", ypat)
    for tt in range(U):
        tile(tt)
    loop_top(f"{name}_yloop")
    for tt in range(U):
        tile(tt)
    loop_end(f"{name}_yloop")
    attn_epilogue()
    A.e("s_waitcnt", "vmcnt(0)")
    A.label(f"{name}_exit")
    A.e("s_endpgm")
    nv = (132 + 8*NB + 7)//8*8
    kd = KD.format(name=name, vgpr=nv, sgpr=96, acc=nv)
    return A.text(), kd
```

```python
from asmlib import *
from layout import *
K3_LDS = 131072 + 64*272
PROF3 = 0x1720000
def gen_k3(name, prof=False, NCH=4):
    A = Asm()
    vL16 = 2
    ACC = 16
    FA = [32, 40, 48, 56]
    XR = 64
    T = 72
    sWS, sX, sOut = 8, 12, 16
    sW, sRt, sCt = 20, 21, 22
    A(f".globl {name}\n.p2align 8\n.type {name},@function\n{name}:")
    A.e("s_cmp_ge_u32", "s2", 256)
    A.e("s_cbranch_scc1", f"{name}_exit")
    A.e("s_load_dwordx2", s(4,2), s(0,2), KA_WS)
    A.e("s_load_dwordx2", s(6,2), s(0,2), KA_X)
    A.e("s_load_dwordx2", s(24,2), s(0,2), KA_OUT)
    if prof:
        A.e("s_memtime", s(40,2)); A.e("s_memrealtime", s(42,2))
    A.e("s_and_b32", "s3", "s2", 7)
    A.e("s_lshr_b32", "s26", "s2", 3)
    A.e("s_lshl_b32", s(sRt), "s3", 2)
    A.e("s_lshr_b32", "s27", "s26", 3)
    A.e("s_add_u32", s(sRt), s(sRt), "s27")
    A.e("s_and_b32", s(sCt), "s26", 7)
    A.e("v_lshrrev_b32", "v1", 6, "v0")
    A.e("v_and_b32", "v3", 63, "v0")
    A.e("v_readfirstlane_b32", s(sW), "v1")
    A.e("v_lshlrev_b32", v(vL16), 4, "v3")
    A.e("s_waitcnt", "lgkmcnt(0)")
    for (r, p, n) in ((sWS, 4, WS_END), (sX, 6, S*D*2), (sOut, 24, S*D*2)):
        A.e("s_mov_b32", s(r), s(p)); A.e("s_mov_b32", s(r+1), s(p+1)); A.e("s_mov_b32", s(r+2), n); A.e("s_mov_b32", s(r+3), "0x20000")
    HP = 32 // NCH
    A.e("s_lshl_b32", "s27", s(sRt), 1)
    A.e("s_add_u32", "s27", "s27", s(sW))
    A.e("s_lshl_b32", "s27", "s27", 15)
    A.e("s_add_u32", "s27", "s27", WS_OF)
    A.e("s_lshl_b32", "s28", s(sCt), 1)
    A.e("s_add_u32", "s28", "s28", s(sW))
    A.e("s_sub_u32", "s28", "s28", 2)
    A.e("s_lshl_b32", "s28", "s28", 15)
    A.e("s_add_u32", "s28", "s28", WS_WOF)
    A.e("s_cmp_lt_u32", s(sW), 2)
    A.e("s_cselect_b32", "s27", "s27", "s28")
    A.e("s_lshl_b32", "s28", s(sW), 15)
    nvm = 0
    for c in range(NCH):
        for hh in range(HP):
            hd = c*HP + hh
            A.e("s_add_u32", "m0", "s28", hd*1024)
            A.e("s_add_u32", "s29", "s27", hd*1024)
            A.e("buffer_load_dwordx4", v(vL16), s(sWS,4), "s29", mods="offen lds")
        if c == 0:
            A.e("s_lshr_b32", "s30", s(sW), 1)
            A.e("s_lshl_b32", "s31", s(sRt), 1)
            A.e("s_add_u32", "s30", "s30", "s31")
            A.e("s_and_b32", "s31", s(sW), 1)
            A.e("s_lshl_b32", "s32", s(sCt), 1)
            A.e("s_add_u32", "s31", "s31", "s32")
            A.e("s_lshl_b32", "s30", "s30", 4)
            A.e("s_add_u32", "s30", "s30", "s31")
            A.e("s_lshl_b32", "s30", "s30", 12)
            A.e("s_add_u32", "s30", "s30", WS_DP)
            for g in range(4):
                A.e("buffer_load_dwordx4", v(ACC+4*g,4), v(vL16), s(sWS,4), "s30", mods=f"offen offset:{g*1024}")
            A.e("v_lshrrev_b32", "v4", 3, "v0")
            A.e("v_and_b32", "v5", 7, "v0")
            A.e("v_lshlrev_b32", "v6", 10, "v4")
            A.e("v_lshlrev_b32", "v7", 4, "v5")
            A.e("v_add_u32", "v6", "v6", "v7")
            A.e("s_lshl_b32", "s33", s(sRt), 16)
            A.e("s_lshl_b32", "s34", s(sCt), 7)
            A.e("s_add_u32", "s33", "s33", "s34")
            A.e("s_add_u32", "s34", "s33", 32768)
            A.e("buffer_load_dwordx4", v(XR,4), "v6", s(sX,4), "s33", mods="offen")
            A.e("buffer_load_dwordx4", v(XR+4,4), "v6", s(sX,4), "s34", mods="offen")
    A.e("s_lshr_b32", "s30", s(sW), 1)
    A.e("s_lshl_b32", "s30", "s30", 15)
    A.e("s_and_b32", "s31", s(sW), 1)
    A.e("s_add_u32", "s31", "s31", 2)
    A.e("s_lshl_b32", "s31", "s31", 15)
    A.e("v_add_u32", "v8", "s30", v(vL16))
    A.e("v_add_u32", "v9", "s31", v(vL16))
    A.e("v_and_b32", "v10", 31, "v3")
    A.e("v_lshrrev_b32", "v11", 5, "v3")
    A.e("s_lshr_b32", "s30", s(sW), 1)
    A.e("s_lshl_b32", "s30", "s30", 5)
    A.e("v_add_u32", "v10", "s30", "v10")
    A.e("v_mul_u32_u24", "v10", 272, "v10")
    A.e("s_and_b32", "s31", s(sW), 1)
    A.e("s_lshl_b32", "s31", "s31", 7)
    A.e("v_lshlrev_b32", "v11", 4, "v11")
    A.e("v_add_u32", "v10", "v10", "v11")
    A.e("s_add_u32", "s31", "s31", 131072)
    A.e("v_add_u32", "v10", "s31", "v10")
    A.e("v_mul_u32_u24", "v11", 272, "v4")
    A.e("v_lshlrev_b32", "v12", 5, "v5")
    A.e("v_add_u32", "v11", "v11", "v12")
    A.e("v_add_u32", "v11", 131072, "v11")
    total_after = lambda c: (NCH-1-c)*HP + (6 if c < 0 else 0)
    for c in range(NCH):
        A.e("s_waitcnt", f"vmcnt({(NCH-1-c)*HP})" if c > 0 else f"vmcnt({(NCH-1)*HP})")
        A.e("s_barrier")
        def rd(i):
            b = FA[i % 4]; hd = c*HP + i
            A.e("ds_read_b128", v(b,4), "v9", mods=f"offset:{hd*1024}")
            A.e("ds_read_b128", v(b+4,4), "v8", mods=f"offset:{hd*1024}")
        npre = min(3, HP)
        for i in range(npre): rd(i)
        for i in range(HP):
            if i + npre < HP: rd(i + npre)
            left = min(HP - 1 - i, npre)
            A.e("s_waitcnt", f"lgkmcnt({2*left})")
            b = FA[i % 4]
            A.e("v_mfma_f32_32x32x16_bf16", v(ACC,16), v(b,4), v(b+4,4), v(ACC,16))
    if prof:
        A.e("s_memtime", s(44,2))
    A.e("s_nop", 15)
    A.e("s_nop", 3)
    for g in range(4):
        A.e("ds_write_b128", "v10", v(ACC+4*g,4), mods=f"offset:{g*32}")
    A.e("s_waitcnt", "lgkmcnt(0)")
    A.e("s_barrier")
    for ps in range(2):
        A.e("ds_read_b128", v(T+8*ps,4), "v11", mods=f"offset:{ps*32*272}")
        A.e("ds_read_b128", v(T+8*ps+4,4), "v11", mods=f"offset:{ps*32*272+16}")
    A.e("s_mov_b32", "s35", "0xffff0000")
    for ps in range(2):
        A.e("s_waitcnt", f"lgkmcnt({2*(1-ps)})")
        for i in range(4):
            xr = XR + 4*ps + i
            A.e("v_lshlrev_b32", "v13", 16, v(xr))
            A.e("v_and_b32", "v14", "s35", v(xr))
            A.e("v_add_f32", v(T+8*ps+2*i), v(T+8*ps+2*i), "v13")
            A.e("v_add_f32", v(T+8*ps+2*i+1), v(T+8*ps+2*i+1), "v14")
        for i in range(4):
            A.e("v_cvt_pk_bf16_f32", v(XR+4*ps+i), v(T+8*ps+2*i), v(T+8*ps+2*i+1))
        A.e("buffer_store_dwordx4", v(XR+4*ps,4), "v6", s(sOut,4), "s33" if ps == 0 else "s34", mods="offen")
    if prof:
        A.e("s_memtime", s(46,2)); A.e("s_memrealtime", s(48,2)); A.e("s_waitcnt", "lgkmcnt(0)")
        A.e("s_lshl_b32", "s50", "s2", 3); A.e("s_add_u32", "s50", "s50", s(sW)); A.e("s_lshl_b32", "s50", "s50", 5)
        A.e("s_add_u32", "s50", "s50", PROF3)
        A.e("v_mov_b32", "v12", "s40"); A.e("v_mov_b32", "v13", "s44"); A.e("v_mov_b32", "v14", "s46"); A.e("v_mov_b32", "v15", "s42")
        A.e("v_mov_b32", "v11", 0); A.e("v_mov_b32", "v10", "s48")
        A.e("buffer_store_dword", "v10", "v11", s(sWS,4), "s50", mods="offen offset:16")
        A.e("buffer_store_dwordx4", v(12,4), "v11", s(sWS,4), "s50", mods="offen")
    A.e("s_waitcnt", "vmcnt(0)")
    A.label(f"{name}_exit")
    A.e("s_endpgm")
    kd = KD.format(name=name, vgpr=88, sgpr=96, acc=88)
    return A.text(), kd
```

```python
S, D, H, DH, F = 2048, 512, 32, 16, 1376
NRB = S // 32
NFS = F // 16
WS_QF  = 0x0000000
WS_KF  = 0x0200000
WS_VF  = 0x0400000
WS_HF  = 0x0600000
WS_OF  = 0x0C00000
WS_W2F = 0x0E00000
WS_WOF = 0x1000000
WS_KM  = 0x1100000
WS_DP  = 0x1200000
WS_END = 0x1800000
WS_SIZE = 268435456
KA_X, KA_WQKV, KA_WO, KA_BX, KA_W1, KA_W3, KA_W2, KA_OUT, KA_DBG, KA_WS = [8*i for i in range(10)]
```

```python
import k1, k2, k3, build, sys
prof = len(sys.argv) > 2 and sys.argv[2] == "prof"
t1, kd1 = k1.gen_k1("proj_kernel", prof=prof)
t2, kd2 = k2.gen_k2("attn_kernel", prof=prof, opat=[2,2,2,2,2,2,2,0], ypat=1)
t3, kd3 = k3.gen_k3("oproj_kernel", prof=prof)
txt = build.assemble([("proj_kernel", t1, kd1, 256, 512, k1.K1_LDS), ("attn_kernel", t2, kd2, 256, 512, k2.K2_LDS), ("oproj_kernel", t3, kd3, 256, 256, k3.K3_LDS)])
open(sys.argv[1], "w").write(txt)
```

```python
from asmlib import *
from layout import *
import struct
K1_LDS = 163840
PROF1 = 0x1740000
def f32hex(x):
    return "0x%08x" % struct.unpack("<I", struct.pack("<f", x))[0]
LOG2E = 1.4426950408889634
PERM = [0,6,7,12, 1,2,8,13, 3,4,9,14, 5,10,11,15]
RING = 65536
NSLOT = 6

class Trk:
    def __init__(self): self.ops = []
    def add(self, tag, cond=False): self.ops.append((tag, cond))
    def after(self, tag):
        idx = [i for i, o in enumerate(self.ops) if o[0] == tag]
        if not idx: return None
        return sum(1 for o in self.ops[idx[-1]+1:] if not o[1])
    def clone(self):
        c = Trk(); c.ops = list(self.ops); return c

class St:
    def __init__(self): self.vm = Trk(); self.lg = Trk()
    def clone(self):
        c = St(); c.vm = self.vm.clone(); c.lg = self.lg.clone(); return c

def gen_k1(name, prof=False, st="", codepf=0, stamp=None, dbg=""):
    A = Asm()
    stm = (" " + st) if st else ""
    vKM, vL16, vWA, vWB = 1, 2, 3, 4
    vWR = [[5, 6], [7, 8]]
    vS1 = [[9, 10], [11, 12]]
    vSA, vSB, vVst = 13, 14, 15
    T = 16
    FB = [48, 56, 36]
    XF = 128
    XA = lambda c: XF + 16*c
    XB = lambda c: XF + 16*c + 4
    ACC0, ACC1 = [64, 80], [96, 112]
    vE, vFR, vTr = 32, [33, 34, 35, 44], 46
    vWI = [33, 34]
    F6 = [48, 52, 56, 60, 36, 40]
    rsA, nbA, rsB, nbB = 24, 26, 28, 30
    sX, sA, sB, sWS = 8, 12, 16, 20
    pQKV, pW1, pW3, pW2, pWO = 24, 26, 28, 30, 32
    sW, sRb, sCh, sRb16, sCg = 34, 35, 36, 37, 38
    sOffA, sOffB, sStr = 39, 40, 41
    sRb32 = 42
    sO0, sO1, sO2 = 43, 44, 45
    sTrS, sTrD = 46, 47
    sTr = 48
    sT0, sT1, sT2, sT3 = 52, 53, 54, 55
    sOnes, sMask = 56, 57
    sNA = 58
    sKMo = 60
    sE0, sE1 = 75, 76
    S_ = St()
    def use(stx):
        nonlocal S_
        S_ = stx
    def vmw(tag):
        n = S_.vm.after(tag)
        if n is not None: A.e("s_waitcnt", f"vmcnt({min(n,63)})")
    def lgw(tag):
        n = S_.lg.after(tag)
        if n is not None: A.e("s_waitcnt", f"lgkmcnt({min(n,15)})")
    def ds(op, *a, mods="", tag="x"):
        A.e(op, *a, mods=mods); S_.lg.add(tag)
    def lg0():
        A.e("s_waitcnt", "lgkmcnt(0)")
    def srd(r, p, n):
        A.e("s_mov_b32", s(r), s(p)); A.e("s_mov_b32", s(r+1), s(p+1)); A.e("s_mov_b32", s(r+2), n); A.e("s_mov_b32", s(r+3), "0x20000")

    A(f".globl {name}\n.p2align 8\n.type {name},@function\n{name}:")
    A.e("s_cmp_ge_u32", "s2", 256)
    A.e("s_cbranch_scc1", f"{name}_exit")
    A.e("s_load_dwordx4", s(4,4), s(0,2), KA_X)
    A.e("s_load_dwordx2", s(62,2), s(0,2), KA_WS)
    A.e("s_load_dwordx2", s(pW1,2), s(0,2), KA_W1)
    A.e("s_load_dwordx2", s(pW3,2), s(0,2), KA_W3)
    A.e("s_load_dwordx2", s(pW2,2), s(0,2), KA_W2)
    A.e("s_load_dwordx2", s(pWO,2), s(0,2), KA_WO)
    if prof:
        A.e("s_memtime", s(64,2)); A.e("s_memrealtime", s(66,2))
    A.e("s_and_b32", "s3", "s2", 7)
    A.e("s_lshr_b32", s(sT0), "s2", 3)
    A.e("s_and_b32", s(sT1), "s3", 1)
    A.e("s_lshl_b32", s(sT1), s(sT1), 3)
    A.e("s_and_b32", s(sT2), s(sT0), 7)
    A.e("s_add_u32", s(sRb16), s(sT1), s(sT2))
    A.e("v_lshrrev_b32", "v1", 6, "v0")
    A.e("v_and_b32", v(T), 63, "v0")
    A.e("v_readfirstlane_b32", s(sW), "v1")
    lane = T
    A.e("v_lshrrev_b32", v(T+1), 3, v(lane))
    A.e("v_and_b32", v(T+2), 7, v(lane))
    A.e("v_lshlrev_b32", v(T+5), 4, v(T+2))
    A.e("s_lshl_b32", s(sT3), s(sW), 3)
    A.e("v_add_u32", v(T+3), s(sT3), v(T+1))
    A.e("v_lshlrev_b32", v(T+4), 10, v(T+3))
    A.e("v_add_u32", v(T+4), v(T+4), v(T+5))
    A.e("s_lshl_b32", s(sT2), s(sRb16), 17)
    A.e("s_add_u32", s(sT3), s(sT2), 65536)
    A.e("s_waitcnt", "lgkmcnt(0)")
    srd(sX, 4, S*D*2)
    for c in range(8):
        A.e("buffer_load_dwordx4", v(XA(c),4), v(T+4), s(sX,4), s(sT2), mods=f"offen offset:{c*128}"); S_.vm.add("xa")
    for c in range(8):
        A.e("buffer_load_dwordx4", v(XB(c),4), v(T+4), s(sX,4), s(sT3), mods=f"offen offset:{c*128}"); S_.vm.add("xb")
    A.e("s_lshr_b32", s(sT1), "s3", 1)
    A.e("s_lshl_b32", s(sT1), s(sT1), 2)
    A.e("s_lshr_b32", s(sT2), s(sT0), 3)
    A.e("s_add_u32", s(sT1), s(sT1), s(sT2))
    A.e("s_lshl_b32", s(sT1), s(sT1), 2)
    pc = sum(p << (4*i) for i, p in enumerate(PERM))
    A.e("s_mov_b32", s(sT2), hex(pc & 0xffffffff))
    A.e("s_mov_b32", s(sT3), hex(pc >> 32))
    A.e("s_lshr_b64", s(sT2,2), s(sT2,2), s(sT1))
    A.e("s_and_b32", s(sCg), s(sT2), 15)
    A.e("v_lshlrev_b32", v(vL16), 4, v(lane))
    A.e("s_and_b32", s(sRb), s(sW), 3)
    A.e("s_lshr_b32", s(sCh), s(sW), 2)
    A.e("s_lshl_b32", s(sRb32), s(sRb16), 2)
    A.e("s_add_u32", s(sRb32), s(sRb32), s(sRb))
    A.e("s_mov_b32", s(pQKV), "s6"); A.e("s_mov_b32", s(pQKV+1), "s7")
    srd(sWS, 62, WS_END)
    if codepf:
        A.e("s_getpc_b64", s(sT2,2))
        A.e("s_and_b32", s(sT2), s(sT2), "0xffffff00")
        A.e("v_lshlrev_b32", v(T+6), 7, v(lane))
        A.e("s_lshl_b32", s(sT1), s(sW), 13)
        A.e("v_add_u32", v(T+6), s(sT1), v(T+6))
        A.e("v_min_u32", v(T+6), codepf - 4, v(T+6))
        A.e("global_load_dword", v(25), v(T+6), s(sT2,2)); S_.vm.add("pf")
    def q4_voffsets(stride, ln, a, b, c_, dA=None, dB=None):
        dA = vWA if dA is None else dA; dB = vWB if dB is None else dB
        A.e("v_lshrrev_b32", v(a), 3, v(ln))
        A.e("s_lshl_b32", s(sT0), s(sW), 3)
        A.e("v_add_u32", v(a), s(sT0), v(a))
        A.e("s_mov_b32", s(sT0), stride)
        A.e("v_mul_lo_u32", v(a), v(a), s(sT0))
        A.e("v_lshrrev_b32", v(b), 4, v(ln))
        A.e("v_and_b32", v(b), 1, v(b))
        A.e("v_lshlrev_b32", v(b), 5, v(b))
        A.e("v_and_b32", v(c_), 7, v(ln))
        A.e("v_lshlrev_b32", v(c_), 4, v(c_))
        A.e("v_xor_b32", v(c_), v(b), v(c_))
        A.e("v_add_u32", v(dA), v(a), v(c_))
        A.e("v_xor_b32", v(c_), 64, v(c_))
        A.e("v_add_u32", v(dB), v(a), v(c_))
    lg_ = A.uid(name+"_i0g"); ld_ = A.uid(name+"_i0d")
    A.e("s_cmp_lt_u32", s(sCg), 12)
    A.e("s_cbranch_scc0", lg_)
    srd(sA, pQKV, D*3*D*2); srd(sB, pQKV, D*3*D*2)
    A.e("s_lshl_b32", s(sOffA), s(sCg), 8)
    A.e("s_add_u32", s(sOffB), s(sOffA), 128)
    A.e("s_mov_b32", s(sStr), 64*3072)
    A.e("s_lshl_b32", s(sNA), s(sCg), 7)
    q4_voffsets(3072, lane, T+6, T+7, T+8)
    A.e("s_branch", ld_)
    A.label(lg_)
    srd(sA, pW1, D*F*2); srd(sB, pW3, D*F*2)
    A.e("s_lshl_b32", s(sT1), s(sCg), 1)
    A.e("s_sub_u32", s(sT1), s(sT1), 12)
    A.e("s_lshl_b32", s(sOffA), s(sT1), 7)
    A.e("s_mov_b32", s(sOffB), s(sOffA))
    A.e("s_add_u32", s(sNA), s(sOffA), 128)
    A.e("s_mov_b32", s(sStr), 64*2752)
    q4_voffsets(2752, lane, T+6, T+7, T+8)
    A.label(ld_)
    def dma_q4(n, cond=False):
        slot = RING + (n % NSLOT)*16384
        A.e("s_lshl_b32", s(sT0), s(sW), 10)
        A.e("s_add_u32", "m0", s(sT0), slot)
        A.e("s_add_u32", s(sT1), s(sT0), slot + 8192)
        A.e("buffer_load_dwordx4", v(vWA), s(sA,4), s(sOffA), mods="offen lds")
        A.e("s_mov_b32", "m0", s(sT1))
        A.e("s_add_u32", s(sOffA), s(sOffA), s(sStr))
        A.e("buffer_load_dwordx4", v(vWB), s(sB,4), s(sOffB), mods="offen lds")
        A.e("s_add_u32", s(sOffB), s(sOffB), s(sStr))
        S_.vm.add(("w", n), cond); S_.vm.add(("w", n), cond)
    dma_q4(0); dma_q4(1)
    A.e("s_sub_u32", s(sT1), "s2", 236)
    A.e("s_cmp_lt_u32", "s2", 236)
    A.e("s_cselect_b32", s(sT0), "s2", s(sT1))
    A.e("s_lshr_b32", s(sT1), s(sT0), 1)
    A.e("s_and_b32", s(sT0), s(sT0), 1)
    A.e("s_lshl_b32", s(sT0), s(sT0), 3)
    A.e("s_add_u32", s(sT0), s(sT0), s(sW))
    A.e("s_sub_u32", s(sT2), s(sT1), 86)
    A.e("s_mov_b32", s(sT3), D*D*2)
    A.e("s_cmp_lt_u32", s(sT1), 86)
    A.e("s_cselect_b32", s(sTr), s(pW2), s(pWO))
    A.e("s_cselect_b32", s(sTr+1), s(pW2+1), s(pWO+1))
    A.e("s_cselect_b32", s(sTr+2), F*D*2, s(sT3))
    A.e("s_mov_b32", s(sTr+3), "0x20000")
    A.e("s_cselect_b32", s(sT2), s(sT1), s(sT2))
    A.e("s_mov_b32", s(sT1), 32768)
    A.e("s_cselect_b32", s(sT1), NFS*1024, s(sT1))
    A.e("s_mov_b32", s(sT3), WS_WOF)
    A.e("s_cselect_b32", s(sT3), WS_W2F, s(sT3))
    A.e("s_mul_i32", s(sT1), s(sT1), s(sT0))
    A.e("s_add_u32", s(sT3), s(sT3), s(sT1))
    A.e("s_lshl_b32", s(sT1), s(sT2), 10)
    A.e("s_add_u32", s(sTrD), s(sT3), s(sT1))
    A.e("s_lshl_b32", s(sTrS), s(sT2), 14)
    A.e("s_lshl_b32", s(sT0), s(sT0), 6)
    A.e("s_add_u32", s(sTrS), s(sTrS), s(sT0))
    A.e("v_lshrrev_b32", v(T+6), 2, v(lane))
    A.e("v_lshlrev_b32", v(T+6), 10, v(T+6))
    A.e("v_and_b32", v(T+7), 3, v(lane))
    A.e("v_lshlrev_b32", v(T+7), 4, v(T+7))
    A.e("v_add_u32", v(T+6), v(T+6), v(T+7))
    A.e("s_lshl_b32", s(sT0), s(sW), 10)
    A.e("s_add_u32", "m0", s(sT0), RING + 5*16384)
    A.e("s_nop", 0)
    A.e("buffer_load_dwordx4", v(T+6), s(sTr,4), s(sTrS), mods="offen lds"); S_.vm.add("tr")
    q4_voffsets(2752, lane, T+6, T+7, T+8, 45, 47)
    A.e("s_mul_i32", s(sT1), s(sRb32), NFS*1024)
    A.e("s_add_u32", s(sO2), s(sT1), WS_HF)
    A.e("s_lshl_b32", s(sT2), s(sCh), 11)
    A.e("s_add_u32", s(sT1), s(sO2), s(sT2))
    A.e("s_lshl_b32", s(sT2), s(sNA), 5)
    A.e("s_add_u32", s(sO1), s(sT1), s(sT2))
    A.e("s_add_u32", s(sT2), s(sCg), 80)
    A.e("s_lshl_b32", s(sT2), s(sT2), 10)
    A.e("s_add_u32", s(sO2), s(sO2), s(sT2))
    A.e("s_sub_u32", s(sO0), s(sO1), 4096)
    A.e("s_and_b32", s(sT1), s(sCg), 3)
    A.e("s_lshl_b32", s(sT1), s(sT1), 3)
    A.e("s_lshl_b32", s(sT2), s(sCh), 1)
    A.e("s_add_u32", s(sT1), s(sT1), s(sT2))
    A.e("s_lshl_b32", s(sT2), s(sT1), 8)
    A.e("s_lshl_b32", s(sT3), s(sRb32), 2)
    A.e("s_add_u32", s(sKMo), s(sT2), s(sT3))
    A.e("s_lshl_b32", s(sT1), s(sT1), 16)
    A.e("s_lshr_b32", s(sT2), s(sCg), 2)
    A.e("s_lshl_b32", s(sT2), s(sT2), 21)
    A.e("s_add_u32", s(sT1), s(sT1), s(sT2))
    A.e("s_lshl_b32", s(sT2), s(sRb32), 10)
    A.e("s_add_u32", s(sT1), s(sT1), s(sT2))
    A.e("s_cmp_lt_u32", s(sCg), 12)
    A.e("s_cselect_b32", s(sO0), s(sT1), s(sO0))
    A.e("v_lshrrev_b32", v(T+6), 1, v(T+3))
    A.e("v_and_b32", v(T+6), 7, v(T+6))
    A.e("v_xor_b32", v(T+6), v(T+6), v(T+2))
    A.e("v_lshlrev_b32", v(T+6), 4, v(T+6))
    A.e("v_lshlrev_b32", v(vE), 7, v(T+3))
    A.e("v_add_u32", v(vE), v(vE), v(T+6))
    A.e("v_and_b32", v(T+7), 31, v(lane))
    A.e("s_lshl_b32", s(sT0), s(sRb), 5)
    A.e("v_add_u32", v(T+7), s(sT0), v(T+7))
    A.e("v_lshlrev_b32", v(T+7), 7, v(T+7))
    A.e("v_lshrrev_b32", v(T+6), 1, v(lane))
    A.e("v_and_b32", v(T+6), 7, v(T+6))
    A.e("v_lshrrev_b32", v(T+8), 5, v(lane))
    A.e("v_xor_b32", v(T+6), v(T+6), v(T+8))
    A.e("v_lshlrev_b32", v(T+6), 4, v(T+6))
    A.e("v_add_u32", v(vFR[0]), v(T+7), v(T+6))
    for ks in range(1, 4): A.e("v_xor_b32", v(vFR[ks]), 32*ks, v(vFR[0]))
    A.e("v_lshrrev_b32", v(T+6), 4, v(lane))
    A.e("v_and_b32", v(T+7), 1, v(T+6))
    A.e("v_lshrrev_b32", v(T+6), 1, v(T+6))
    A.e("v_and_b32", v(T+8), 15, v(lane))
    A.e("v_lshrrev_b32", v(T+12), 2, v(T+8))
    A.e("v_and_b32", v(T+8), 3, v(T+8))
    A.e("v_lshlrev_b32", v(T+13), 3, v(T+6))
    A.e("v_add_u32", v(T+13), v(T+13), v(T+12))
    A.e("v_lshlrev_b32", v(T+13), 7, v(T+13))
    A.e("v_lshlrev_b32", v(T+14), 13, v(T+7))
    A.e("v_add_u32", v(T+13), v(T+13), v(T+14))
    A.e("v_lshrrev_b32", v(T+14), 1, v(T+12))
    A.e("v_lshlrev_b32", v(T+15), 1, v(T+7))
    A.e("v_or_b32", v(T+14), v(T+14), v(T+15))
    A.e("s_lshl_b32", s(sT0), s(sCh), 1)
    A.e("v_xor_b32", v(T+14), s(sT0), v(T+14))
    A.e("v_lshlrev_b32", v(T+14), 5, v(T+14))
    A.e("v_lshlrev_b32", v(T+15), 3, v(T+8))
    A.e("v_add_u32", v(T+14), v(T+14), v(T+15))
    A.e("v_add_u32", v(T+13), v(T+13), v(T+14))
    A.e("v_add_u32", v(vWR[0][0]), RING, v(T+13))
    A.e("v_xor_b32", v(vWR[0][1]), 32, v(vWR[0][0]))
    A.e("v_add_u32", v(vWR[1][0]), 49152, v(vWR[0][0]))
    A.e("v_add_u32", v(vWR[1][1]), 49152, v(vWR[0][1]))
    for j in range(2):
        A.e("v_xor_b32", v(T+13), j, v(T+7))
        A.e("v_lshlrev_b32", v(T+13), 2, v(T+13))
        A.e("v_add_u32", v(T+13), v(T+13), v(T+12))
        A.e("v_lshlrev_b32", v(T+14), 3, v(T+6))
        A.e("v_add_u32", v(T+13), v(T+13), v(T+14))
        A.e("v_lshlrev_b32", v(T+13), 5, v(T+13))
        A.e("v_lshlrev_b32", v(T+14), 13, v(T+7))
        A.e("v_add_u32", v(T+13), v(T+13), v(T+14))
        A.e("v_lshlrev_b32", v(T+14), 3, v(T+8))
        A.e("v_add_u32", v(T+13), v(T+13), v(T+14))
        A.e("v_add_u32", v(vS1[0][j]), RING, v(T+13))
        A.e("v_mov_b32", v(vS1[1][j]), v(T+13))
    A.e("v_lshlrev_b32", v(T+13), 2, v(T+6))
    A.e("v_add_u32", v(T+13), v(T+13), v(T+12))
    A.e("v_lshlrev_b32", v(T+13), 6, v(T+13))
    A.e("v_lshlrev_b32", v(T+14), 5, v(T+7))
    A.e("v_add_u32", v(T+13), v(T+13), v(T+14))
    A.e("v_lshlrev_b32", v(T+14), 3, v(T+8))
    A.e("v_add_u32", v(T+13), v(T+13), v(T+14))
    A.e("s_lshl_b32", s(sT0), s(sW), 10)
    A.e("s_add_u32", s(sT0), s(sT0), RING + 5*16384)
    A.e("v_add_u32", v(vTr), s(sT0), v(T+13))
    A.e("v_lshlrev_b32", v(T+14), 18, v(T+7))
    A.e("v_lshlrev_b32", v(T+15), 8, v(T+6))
    A.e("v_add_u32", v(T+14), v(T+14), v(T+15))
    A.e("v_and_b32", v(T+15), 15, v(lane))
    A.e("v_lshlrev_b32", v(T+15), 4, v(T+15))
    A.e("v_add_u32", v(vVst), v(T+14), v(T+15))
    A.e("v_lshlrev_b32", v(vKM), 10, v(T+6))
    a, b, c_ = T+12, T+13, T+14
    A.e("v_lshrrev_b32", v(b), 1, v(lane))
    A.e("s_lshl_b32", s(sT0), s(sW), 5)
    A.e("v_add_u32", v(b), s(sT0), v(b))
    A.e("v_and_b32", v(a), 1, v(lane))
    A.e("v_lshlrev_b32", v(a), 4, v(a))
    A.e("s_movk_i32", s(sT0), 2752)
    A.e("v_mul_lo_u32", v(c_), v(b), s(sT0))
    A.e("v_add_u32", v(vSA), v(c_), v(a))
    A.e("v_xor_b32", v(b), 4, v(b))
    A.e("v_mul_lo_u32", v(c_), v(b), s(sT0))
    A.e("v_add_u32", v(vSB), v(c_), v(a))
    A.e("s_mov_b32", s(sOnes), "0x3f803f80")
    A.e("s_mov_b32", s(sMask), "0xffff0000")
    def stats(X, rs, nb):
        a0, a1, b0, b1, m = T, T+1, T+2, T+3, T+4
        for r in (a0, a1, b0, b1): A.e("v_mov_b32", v(r), 0)
        for i in range(32):
            x = X(i // 4) + i % 4
            A.e("v_dot2_f32_bf16", v(a0 + (i & 1)), v(x), s(sOnes), v(a0 + (i & 1)))
            A.e("v_dot2_f32_bf16", v(b0 + (i & 1)), v(x), v(x), v(b0 + (i & 1)))
        A.e("s_nop", 2)
        A.e("v_add_f32", v(a0), v(a0), v(a1))
        A.e("v_add_f32", v(b0), v(b0), v(b1))
        A.e("s_nop", 0)
        for mod in ("quad_perm:[1,0,3,2]", "quad_perm:[2,3,0,1]", "row_half_mirror"):
            A.e("v_add_f32_dpp", v(a0), v(a0), v(a0), mods=f"{mod} row_mask:0xf bank_mask:0xf")
            A.e("v_add_f32_dpp", v(b0), v(b0), v(b0), mods=f"{mod} row_mask:0xf bank_mask:0xf")
            A.e("s_nop", 0)
        A.e("v_mul_f32", v(m), f32hex(1.0/512), v(a0))
        A.e("v_mul_f32", v(b0), f32hex(1.0/512), v(b0))
        A.e("v_fma_f32", v(b0), f"-{v(m)}", v(m), v(b0))
        A.e("v_max_f32", v(b0), 0, v(b0))
        A.e("v_add_f32", v(b0), f32hex(1e-5), v(b0))
        A.e("v_rsq_f32", v(rs), v(b0))
        A.e("s_nop", 0)
        A.e("v_mul_f32", v(nb), v(m), v(rs))
        A.e("v_sub_f32", v(nb), 0, v(nb))
    def F_(op, *a, mods="", vm=None, lg=None):
        def f():
            A.e(op, *a, mods=mods)
            if vm is not None: S_.vm.add(vm)
            if lg is not None: S_.lg.add(lg)
        return f
    def norm_valu(b, rs, nb):
        L = []
        for i in range(4): L.append(F_("v_lshlrev_b32", v(T+2*i), 16, v(b+i)))
        for i in range(4): L.append(F_("v_and_b32", v(T+2*i+1), s(sMask), v(b+i)))
        for i in range(4): L.append(F_("v_pk_fma_f32", v(T+2*i,2), v(T+2*i,2), v(rs,2), v(nb,2), mods="op_sel_hi:[1,0,0]"))
        for i in range(4): L.append(F_("v_cvt_pk_bf16_f32", v(b+i), v(T+2*i), v(T+2*i+1)))
        return L
    def img_write(c, half):
        b = XA(c) if half == 0 else XB(c)
        return F_("ds_write_b128", v(vE), v(b,4), mods=f"offset:{(c % 4)*16384 + half*8192}", lg=("iw", c))
    def norm_chunk(c, write=True):
        L = []
        for half, (b, rs, nb) in enumerate(((XA(c), rsA, nbA), (XB(c), rsB, nbB))):
            L += norm_valu(b, rs, nb)
            if write: L.append(img_write(c, half))
        return L
    def frag_reads(c):
        return [F_("ds_read_b128", v(XF + 16*c + 4*ks, 4), v(vFR[ks]), mods=f"offset:{(c % 4)*16384}", lg=("fr", c)) for ks in range(4)]
    def run(L):
        for f in L: f()
    vmw("xa")
    if prof: A.e("s_memtime", s(78,2))
    dma_q4(2); dma_q4(3); dma_q4(4)
    stats(XA, rsA, nbA)
    if stamp == 99: A.e("s_memtime", s(84,2))
    vmw("xb")
    if stamp == 99: A.e("s_memtime", s(86,2))
    stats(XB, rsB, nbB)
    if stamp == 99: A.e("s_memtime", s(88,2))
    for c in range(4): run(norm_chunk(c))
    if prof: A.e("s_memtime", s(80,2))
    vmw("tr")
    if stamp == 99: A.e("s_memtime", s(90,2))
    lg0(); S_.lg = Trk()
    if stamp == 99: A.e("s_memtime", s(92,2))
    A.e("s_barrier")
    if stamp == 99: A.e("s_memtime", s(94,2))
    fr = [f for c in range(4) for f in frag_reads(c)]
    nv = [f for c in range(4, 8) for f in norm_chunk(c, write=False)]
    for i, f in enumerate(nv):
        f()
        if i % 6 == 1 and fr: fr.pop(0)()
    run(fr)
    if stamp == 99: A.e("s_memtime", s(96,2))
    lg0(); S_.lg = Trk()
    if stamp == 99: A.e("s_memtime", s(98,2))
    A.e("s_barrier")
    if prof:
        A.e("s_memtime", s(68,2))

    def epi_gu(lst):
        L = []
        for (tb, so, imm) in lst:
            for r in range(8):
                g, u = tb + r, tb + 8 + r
                t = T + 2*(r % 4)
                L.append(F_("v_mul_f32", v(t), f32hex(-LOG2E), v(g)))
                L.append(F_("v_exp_f32", v(t), v(t)))
                L.append(F_("v_mul_f32", v(u), v(g), v(u)))
                L.append(F_("v_add_f32", v(t), 1.0, v(t)))
                L.append(F_("v_rcp_f32", v(t), v(t)))
                L.append(F_("s_nop", 0))
                L.append(F_("v_mul_f32", v(g), v(u), v(t)))
                if r % 2 == 1:
                    L.append(F_("v_cvt_pk_bf16_f32", v(T+8 + r//2), v(g-1), v(g)))
            L.append(F_("buffer_store_dwordx4", v(T+8,4), v(vL16), s(sWS,4), s(so), mods=f"offen offset:{imm}"+stm, vm="st"))
            L.append(F_("s_nop", 0))
        return L
    def epi_qk(tiles, so, is_q):
        L = []
        for (tb, uu) in tiles:
            na, nb_ = T+8, T+9
            if is_q:
                for i in range(16): L.append(F_("v_mul_f32", v(tb+i), f32hex(0.25*LOG2E), v(tb+i)))
            L.append(F_("v_mul_f32", v(na), v(tb), v(tb)))
            L.append(F_("v_mul_f32", v(nb_), v(tb+8), v(tb+8)))
            for i in range(1, 8):
                L.append(F_("v_fma_f32", v(na), v(tb+i), v(tb+i), v(na)))
                L.append(F_("v_fma_f32", v(nb_), v(tb+8+i), v(tb+8+i), v(nb_)))
            for i in range(8):
                L.append(F_("v_cvt_pk_bf16_f32", v(T+i), v(tb+2*i), v(tb+2*i+1)))
            L.append(F_("s_add_u32", s(sE0), s(so), uu*65536))
            L.append(F_("s_add_u32", s(sE1), s(so), (uu+4)*65536))
            L.append(F_("v_permlane32_swap_b32", v(na), v(nb_)))
            L.append(F_("buffer_store_dwordx4", v(T,4), v(vL16), s(sWS,4), s(sE0), mods="offen"+stm, vm="st"))
            L.append(F_("buffer_store_dwordx4", v(T+4,4), v(vL16), s(sWS,4), s(sE1), mods="offen"+stm, vm="st"))
            L.append(F_("v_add_f32", v(na), v(na), v(nb_)))
            for mod in ("quad_perm:[1,0,3,2]", "quad_perm:[2,3,0,1]", "row_half_mirror", "row_mirror"):
                L.append(F_("s_nop", 1))
                L.append(F_("v_max_f32_dpp", v(na), v(na), v(na), mods=f"{mod} row_mask:0xf bank_mask:0xf"))
            L.append(F_("v_mov_b32", v(nb_), v(na)))
            L.append(F_("s_nop", 1))
            L.append(F_("v_permlane16_swap_b32", v(na), v(nb_)))
            L.append(F_("s_nop", 1))
            L.append(F_("v_max_f32", v(na), v(na), v(nb_)))
            L.append(F_("s_add_u32", s(sE0), s(sKMo), uu*256 + WS_KM + (0x2000 if is_q else 0)))
            L.append(F_("buffer_store_dword", v(na), v(vKM), s(sWS,4), s(sE0), mods="offen"+stm, vm="st"))
        return L
    def epi_v(tiles, so):
        L = []
        for (tb, uu) in tiles:
            for i in range(8):
                L.append(F_("v_cvt_pk_bf16_f32", v(T+i), v(tb+2*i), v(tb+2*i+1)))
            L.append(F_("s_add_u32", s(sE0), s(so), uu*65536))
            L.append(F_("buffer_store_dwordx4", v(T,4), v(vVst), s(sWS,4), s(sE0), mods="offen"+stm, vm="st"))
            L.append(F_("buffer_store_dwordx4", v(T+4,4), v(vVst), s(sWS,4), s(sE0), mods="offen offset:512"+stm, vm="st"))
            L.append(F_("s_nop", 0))
        return L

    def rd_q4(n, ks, gk):
        slot = n % NSLOT; grp = slot // 3; base = (slot % 3)*16384 + ks*2048; b = FB[gk % 3]
        for uu in range(2):
            for j in range(2):
                ds("ds_read_b64_tr_b16", v(b + 4*uu + 2*j, 2), v(vWR[grp][uu]), mods=f"offset:{base + j*512}", tag=("f", gk))
    Q6 = [36, 40, 48, 52, 56, 60]
    def loc_q4(n):
        return {8: (vWR[0], 32768), 9: (vWR[1], 0), 10: (vWR[1], 16384), 11: (vWR[1], 32768), 12: (vWR[0], 0),
                13: (vWI, 0), 14: (vWI, 16384), 15: (vWI, 32768)}[n]
    def lds_q4(n):
        return {8: RING+32768, 9: RING+49152, 10: RING+65536, 11: RING+81920, 12: RING, 13: 0, 14: 16384, 15: 32768, 16: 49152, 17: RING+16384}[n]
    def rd_i1(gj):
        b = Q6[gj % 6]
        if gj < 64:
            uu, kk = gj // 32, gj % 32
            regs, off = loc_q4(8 + kk // 4)
            for j in range(2):
                ds("ds_read_b64_tr_b16", v(b + 2*j, 2), v(regs[uu]), mods=f"offset:{off + (kk % 4)*2048 + j*512}", tag=("g", gj))
        elif gj < 96:
            kk = gj - 64
            for j in range(2):
                if kk < 16: ds("ds_read_b64_tr_b16", v(b + 2*j, 2), v(vS1[1][j]), mods=f"offset:{49152 + kk*512}", tag=("g", gj))
                else: ds("ds_read_b64_tr_b16", v(b + 2*j, 2), v(vS1[0][j]), mods=f"offset:{16384 + (kk-16)*512}", tag=("g", gj))
    def dma_at(n, lds, va, vb, offa, offb, cond=False):
        A.e("s_lshl_b32", s(sT0), s(sW), 10)
        A.e("s_add_u32", "m0", s(sT0), lds)
        A.e("s_add_u32", s(sT1), s(sT0), lds + 8192)
        A.e("buffer_load_dwordx4", v(va), s(sA,4), s(offa), mods="offen lds")
        A.e("s_mov_b32", "m0", s(sT1))
        A.e("s_nop", 0)
        A.e("buffer_load_dwordx4", v(vb), s(sB,4), s(offb), mods="offen lds")
        S_.vm.add(("w", n), cond); S_.vm.add(("w", n), cond)
    def dma_single(n):
        lb = A.uid(name+"_s1d")
        A.e("s_cmp_lt_u32", s(sCg), 6)
        A.e("s_cbranch_scc0", lb)
        A.e("s_add_u32", s(sT2), s(sCg), 80)
        A.e("s_lshl_b32", s(sT2), s(sT2), 5)
        if n == 17: A.e("s_add_u32", s(sT2), s(sT2), 256*2752)
        dma_at(n, lds_q4(n), vSA, vSB, sT2, sT2, cond=True)
        A.label(lb)
    def pf_item0(c):
        n = c + 5
        if n == 8:
            A.e("s_mov_b32", s(sOffA), s(sNA)); A.e("s_mov_b32", s(sOffB), s(sNA))
            srd(sA, pW1, D*F*2); srd(sB, pW3, D*F*2)
            A.e("s_mov_b32", s(sStr), 64*2752)
            A.e("v_mov_b32", v(vWA), v(45)); A.e("v_mov_b32", v(vWB), v(47))
        dma_q4(n)
        if c >= 5:
            A.e("s_add_u32", s(sT2), s(sOffA), s(sStr))
            A.e("s_add_u32", s(sT2), s(sT2), s(sStr))
            dma_at(c + 8, lds_q4(c + 8), vWA, vWB, sT2, sT2)
        if c == 7: dma_single(16)

    def spread(plans, kk):
        for p in plans:
            a, b, L, i = p
            if a <= kk < b:
                k = -(-(len(L) - i) // (b - kk))
                for _ in range(k):
                    L[p[3]](); p[3] += 1
    def drain(plans):
        for p in plans:
            while p[3] < len(p[2]): p[2][p[3]](); p[3] += 1

    def rd_q4u(n, ks, gk, uu):
        slot = n % NSLOT; grp = slot // 3; base = (slot % 3)*16384 + ks*2048; b = FB[gk % 3]
        for j in range(2):
            ds("ds_read_b64_tr_b16", v(b + 4*uu + 2*j, 2), v(vWR[grp][uu]), mods=f"offset:{base + j*512}", tag=("f", gk, uu))
    def item0(swapped):
        for c in range(8):
            if stamp == 0: A.e("s_memtime", s(84+2*c,2))
            if c > 0:
                if c == 2: lgw(("iw", 7))
                if c == 4: lgw(("fr", 7))
                if "novm" not in dbg: vmw(("w", c+1))
                if "nobar" not in dbg: A.e("s_barrier")
            plans = []
            if c < 2 and "nowr" not in dbg: plans.append([0, 7, [img_write(4 + 2*c + i//2, i % 2) for i in range(4)], 0])
            if c in (2, 3) and "nofr" not in dbg: plans.append([0, 8, frag_reads(2*c) + frag_reads(2*c+1), 0])
            for ks in range(4):
                kk = 4*c + ks
                for uu in range(2):
                    lgw(("f", kk, uu))
                    d = v(ACC0[uu], 16); wf = v(FB[kk % 3] + 4*uu, 4); xf = v(XF + 4*kk, 4)
                    cc = 0 if kk == 0 else d
                    if swapped: A.e("v_mfma_f32_32x32x16_bf16", d, xf, wf, cc)
                    else: A.e("v_mfma_f32_32x32x16_bf16", d, wf, xf, cc)
                    if kk + 2 < 32: rd_q4u((kk+2)//4, (kk+2) % 4, kk+2, uu)
                    elif kk == 30: rd_i1(uu)
                    else: rd_i1(2 + uu)
                    if ks == 0 and uu == 1: pf_item0(c)
                    spread(plans, 2*ks + uu)
            drain(plans)

    def passes(gj0, gj1, accf, fillplans, events, stamp_on=False):
        plans = [[a, b, list(L), 0] for (a, b, L) in fillplans]
        for gj in range(gj0, gj1):
            if stamp_on and gj % 8 == 0 and gj < 64: A.e("s_memtime", s(84+2*(gj//8),2))
            if gj in events: events[gj]()
            lgw(("g", gj))
            kk = gj % 32
            d = v(accf(gj), 16)
            A.e("v_mfma_f32_32x32x16_bf16", d, v(Q6[gj % 6], 4), v(XF + 4*kk, 4), 0 if kk == 0 else d)
            if gj + 4 < 96: rd_i1(gj + 4)
            spread(plans, gj)
        drain(plans)

    ds("ds_read_b64_tr_b16", v(T,2), v(vTr), mods="offset:0", tag="trr")
    ds("ds_read_b64_tr_b16", v(T+2,2), v(vTr), mods="offset:512", tag="trr")
    for gk in range(2):
        for uu in range(2): rd_q4u(0, gk, gk, uu)
    lgw("trr")
    A.e("buffer_store_dwordx4", v(T,4), v(vL16), s(sWS,4), s(sTrD), mods="offen"+stm); S_.vm.add("st")
    A.e("s_nop", 1)
    st_item0 = S_.clone()
    L_sw = f"{name}_i0s"; L_i1 = f"{name}_i1"
    A.e("s_sub_u32", s(sT0), s(sCg), 8)
    A.e("s_cmp_lt_u32", s(sT0), 4)
    A.e("s_cbranch_scc1", L_sw)
    ends = []
    for swapped in (False, True):
        if swapped: A.label(L_sw)
        use(st_item0.clone())
        item0(swapped)
        ends.append(S_)
        if not swapped: A.e("s_branch", L_i1)
    A.label(L_i1)
    assert ends[0].vm.ops == ends[1].vm.ops and ends[0].lg.ops == ends[1].lg.ops
    st_item1 = ends[0]
    if prof:
        A.e("s_memtime", s(82,2))
    for uu in range(2): A.e("v_subrev_u32", v(vWI[uu]), RING, v(vWR[0][uu]))
    LQ, LK, LV, LG, LT = (f"{name}_{x}" for x in ("dq", "dk", "dv", "dg", "tail"))
    A.e("s_cmp_lt_u32", s(sCg), 4); A.e("s_cbranch_scc1", LQ)
    A.e("s_cmp_lt_u32", s(sCg), 8); A.e("s_cbranch_scc1", LK)
    A.e("s_cmp_lt_u32", s(sCg), 12); A.e("s_cbranch_scc1", LV)
    A.e("s_branch", LG)
    t0 = [(ACC0[0], 0), (ACC0[1], 1)]
    variants = [(LQ, lambda: epi_qk(t0, sO0, True)), (LK, lambda: epi_qk(t0, sO0, False)), (LV, lambda: epi_v(t0, sO0)),
                (LG, lambda: epi_gu([(ACC0[0], sO0, 0), (ACC0[1], sO0, 1024)]))]
    def ev_start():
        vmw(("w", 11)); A.e("s_barrier"); dma_single(17)
    def ev_mid():
        vmw(("w", 15)); A.e("s_barrier")
    ends = []
    for (lbl, mk) in variants:
        A.label(lbl)
        use(st_item1.clone())
        passes(0, 32, lambda gj: ACC1[0], [(1, 30, mk())], {0: ev_start, 12: ev_mid}, stamp_on=(stamp == 8))
        ends.append(S_)
        A.e("s_branch", LT)
    A.label(LT)
    ns = [e.vm.after(("w", 17)) for e in ends]
    use(ends[ns.index(min(ns))].clone())
    def ev_s1():
        vmw(("w", 17)); A.e("s_barrier")
    passes(32, 64, lambda gj: ACC1[1], [(34, 62, epi_gu([(ACC1[0], sO1, 0)]))], {32: ev_s1}, stamp_on=(stamp == 8))
    LS = f"{name}_s1"; LS1 = f"{name}_s1c1"
    A.e("s_cmp_lt_u32", s(sCg), 6)
    A.e("s_cbranch_scc0", LS1)
    A.e("s_cmp_eq_u32", s(sCh), 0)
    A.e("s_cbranch_scc1", LS)
    A.label(LS1)
    base = S_.clone()
    A.e("s_nop", 15)
    run(epi_gu([(ACC1[1], sO1, 1024)]))
    A.e("s_branch", f"{name}_done")
    A.label(LS)
    use(base)
    passes(64, 96, lambda gj: ACC0[0], [(66, 94, epi_gu([(ACC1[1], sO1, 1024)]))], {})
    A.e("s_nop", 15)
    run(epi_gu([(ACC0[0], sO2, 0)]))
    A.label(f"{name}_done")
    if prof:
        A.e("s_memtime", s(70,2)); A.e("s_memrealtime", s(72,2)); A.e("s_waitcnt", "lgkmcnt(0)")
        A.e("s_lshl_b32", "s74", "s2", 3); A.e("s_add_u32", "s74", "s74", s(sW)); A.e("s_lshl_b32", "s74", "s74", 5)
        A.e("s_add_u32", "s74", "s74", PROF1)
        A.e("v_mov_b32", v(T), "s64"); A.e("v_mov_b32", v(T+1), "s68"); A.e("v_mov_b32", v(T+2), "s70"); A.e("v_mov_b32", v(T+3), "s66")
        A.e("v_mov_b32", v(T+4), 0); A.e("v_mov_b32", v(T+6), "s72")
        A.e("v_mov_b32", v(T+7), "s78"); A.e("v_mov_b32", v(T+8), "s80"); A.e("v_mov_b32", v(T+9), "s82")
        A.e("buffer_store_dwordx4", v(T+6,4), v(T+4), s(sWS,4), "s74", mods="offen offset:16")
        A.e("buffer_store_dwordx4", v(T,4), v(T+4), s(sWS,4), "s74", mods="offen")
        if stamp is not None:
            A.e("s_add_u32", "s74", "s74", 0x10000)
            for i in range(8): A.e("v_mov_b32", v(T+8+i), s(84+2*i))
            A.e("buffer_store_dwordx4", v(T+8,4), v(T+4), s(sWS,4), "s74", mods="offen")
            A.e("buffer_store_dwordx4", v(T+12,4), v(T+4), s(sWS,4), "s74", mods="offen offset:16")
    A.e("s_waitcnt", "vmcnt(0)")
    A.label(f"{name}_exit")
    A.e("s_endpgm")
    kd = KD.format(name=name, vgpr=256, sgpr=102, acc=256)
    return A.text(), kd
```

```python
import k1, k2, k3, build
from asmlib import KD
t1, kd1 = k1.gen_k1("proj_kernel", codepf=0)
t2, kd2 = k2.gen_k2("attn_kernel", opat=[2,2,2,2,2,2,2,0], ypat=1)
t3, kd3 = k3.gen_k3("oproj_kernel")
te = ".globl nop_kernel\n.p2align 8\n.type nop_kernel,@function\nnop_kernel:\n  s_endpgm\n"
kde = KD.format(name="nop_kernel", vgpr=8, sgpr=16, acc=8)
K1=("proj_kernel", t1, kd1, 256, 512, k1.K1_LDS); K2=("attn_kernel", t2, kd2, 256, 512, k2.K2_LDS); K3=("oproj_kernel", t3, kd3, 256, 256, k3.K3_LDS)
E=("nop_kernel", te, kde, 256, 64, 0)
for nm, l in (("A",[K1,K2,K3]),("B",[K1,K2,K3,K3]),("C",[K1,K2,K2,K3]),("D",[K1,K1,K2,K3]),("E",[E,K1,K2,K3]),("F",[K1,K2,K3,E])):
    open(f"../cand/exp{nm}.s","w").write(build.assemble(l))
```

```python
import k1, k2, k3, build, re
from asmlib import *
from layout import *
def add_dbg(text, name, marker, wsreg_load=True):
    lines = text.split("\n")
    out = []
    for l in lines:
        out.append(l)
        if l.strip() == f"{name}:":
            out.append("  s_memrealtime s[92:93]")
            out.append("  s_memtime s[94:95]")
            out.append("  s_load_dwordx2 s[96:97], s[0:1], 64")
            out.append("  s_mov_b32 s98, s2")
    text = "\n".join(out)
    tail = f"""  s_waitcnt vmcnt(0)
  s_memrealtime s[100:101]
  s_memtime s[90:91]
  s_waitcnt lgkmcnt(0)
  s_and_b32 s99, s98, 63
  s_cmp_eq_u32 s99, 0
  s_cbranch_scc0 SKIP@
  s_lshr_b32 s99, s98, 6
  s_lshl_b32 s99, s99, 4
  v_mov_b32 v2, s92
  v_mov_b32 v3, s100
  s_sub_u32 s90, s90, s94
  v_mov_b32 v4, s90
  v_mov_b32 v5, {marker}
  v_mov_b32 v6, s99
  global_store_dwordx4 v6, v[2:5], s[96:97]
  s_waitcnt vmcnt(0)
SKIP@:
  s_endpgm"""
    cnt = [0]
    def rep(m):
        cnt[0] += 1
        return tail.replace("@", f"_{name}_{cnt[0]}")
    text = re.sub(r"  s_waitcnt vmcnt\(0\)\n(?:\w+:\n)?  s_endpgm", lambda m: rep(m) if ":" not in m.group(0) else m.group(0).replace("  s_waitcnt vmcnt(0)\n", rep(m).replace("  s_endpgm","  s_endpgm") + "\n").replace("  s_endpgm\n  s_endpgm","  s_endpgm"), text)
    return text
t1, kd1 = k1.gen_k1("proj_kernel", codepf=0)
t2, kd2 = k2.gen_k2("attn_kernel", opat=[2,2,2,2,2,2,2,0], ypat=1)
t3, kd3 = k3.gen_k3("oproj_kernel")
t1 = add_dbg(t1, "proj_kernel", 0x111); t2 = add_dbg(t2, "attn_kernel", 0x222); t3 = add_dbg(t3, "oproj_kernel", 0x333)
kd2 = kd2.replace("next_free_sgpr 96", "next_free_sgpr 102"); kd3 = kd3.replace("next_free_sgpr 96", "next_free_sgpr 102")
K1=("proj_kernel", t1, kd1, 256, 512, k1.K1_LDS); K2=("attn_kernel", t2, kd2, 256, 512, k2.K2_LDS); K3=("oproj_kernel", t3, kd3, 256, 256, k3.K3_LDS)
open("../cand/expdbg.s","w").write(build.assemble([K1,K2,K3]))
```

```python
import k1, k2, k3, build, re, sys
from asmlib import *
from layout import *
OFF = 0x17F0000
def add_dbg(text, name, kidx, last):
    out = []
    for l in text.split("\n"):
        out.append(l)
        if l.strip() == f"{name}:":
            out.append("  s_memrealtime s[92:93]")
            out.append("  s_load_dwordx2 s[96:97], s[0:1], 64")
            out.append("  s_load_dwordx2 s[94:95], s[0:1], 72")
            out.append("  s_mov_b32 s98, s2")
    text = "\n".join(out)
    tail = f"""  s_waitcnt vmcnt(0)
  s_memrealtime s[100:101]
  s_waitcnt lgkmcnt(0)
  s_add_u32 s99, s98, 1
  s_and_b32 s99, s99, 254
  s_cmp_eq_u32 s99, 0
  s_cbranch_scc0 SKIP@
  s_and_b32 s99, s98, 1
  s_lshl_b32 s99, s99, 3
  s_add_u32 s99, s99, {OFF + kidx*16}
  v_mov_b32 v2, s92
  v_mov_b32 v3, s100
  v_mov_b32 v6, s99
  global_store_dwordx2 v6, v[2:3], s[94:95] sc1
  s_waitcnt vmcnt(0)
"""
    if last:
        tail += f"""  s_cmp_eq_u32 s98, 0
  s_cbranch_scc0 SKIP@
  v_and_b32 v6, 15, v0
  v_lshlrev_b32 v6, 2, v6
  v_add_u32 v7, {OFF}, v6
  global_load_dword v2, v7, s[94:95] sc1
  s_waitcnt vmcnt(0)
  global_store_dword v6, v2, s[96:97]
  s_waitcnt vmcnt(0)
"""
    tail += "SKIP@:\n  s_endpgm"
    cnt = [0]
    def rep(m):
        cnt[0] += 1
        t = tail.replace("@", f"_{name}_{cnt[0]}")
        lab = m.group(1) or ""
        return t + ("\n" + lab + "  s_endpgm" if lab else "")
    return re.sub(r"  s_waitcnt vmcnt\(0\)(?: lgkmcnt\(0\))?\n(\w+:\n)?  s_endpgm", rep, text)
def build_dbg(path, k1kw={}, k2kw=None, st1="", st2=""):
    if k2kw is None: k2kw = dict(opat=[2,2,2,2,2,2,2,0], ypat=1)
    t1, kd1 = k1.gen_k1("proj_kernel", st=st1, **k1kw)
    t2, kd2 = k2.gen_k2("attn_kernel", st=st2, **k2kw)
    t3, kd3 = k3.gen_k3("oproj_kernel")
    t1 = add_dbg(t1, "proj_kernel", 0, False); t2 = add_dbg(t2, "attn_kernel", 1, False); t3 = add_dbg(t3, "oproj_kernel", 2, True)
    kd2 = kd2.replace("next_free_sgpr 96", "next_free_sgpr 102"); kd3 = kd3.replace("next_free_sgpr 96", "next_free_sgpr 102")
    K1=("proj_kernel", t1, kd1, 256, 512, k1.K1_LDS); K2=("attn_kernel", t2, kd2, 256, 512, k2.K2_LDS); K3=("oproj_kernel", t3, kd3, 256, 256, k3.K3_LDS)
    open(path,"w").write(build.assemble([K1,K2,K3]))
if __name__ == "__main__":
    build_dbg("../cand/expdbg.s")
```

```python
import sys, subprocess
kernels = {}
def kern(name, body, iters=200, pre="", vgpr=256, acc=256, post=""):
    kernels[name] = (body, iters, pre, vgpr, acc, post)

def emit():
    out = ['.amdgcn_target "amdgcn-amd-amdhsa--gfx950"', '.text']
    meta = []
    for name,(body,iters,pre,vgpr,acc,post) in kernels.items():
        out.append(f""".globl {name}
.p2align 8
.type {name},@function
{name}:
  s_load_dwordx2 s[4:5], s[0:1], 0
  s_load_dwordx2 s[6:7], s[0:1], 8
  v_lshrrev_b32 v1, 6, v0
  s_nop 1
  v_readfirstlane_b32 s10, v1
  s_waitcnt lgkmcnt(0)
""")
        for r in range(2, min(acc,256)):
            out.append(f"  v_mov_b32 v{r}, 0x3c{(r%64):02x}3c00")
        out.append(pre)
        out.append(f"""  s_mov_b32 s18, 3
  s_mov_b32 s19, -1
L_{name}_outer:
  s_mov_b32 s11, {iters}
  s_barrier
  s_memtime s[12:13]
  s_waitcnt lgkmcnt(0)
.p2align 6
L_{name}_loop:
{body}
  s_sub_u32 s11, s11, 1
  s_cmp_lg_u32 s11, 0
  s_cbranch_scc1 L_{name}_loop
{post}
  s_waitcnt vmcnt(0) lgkmcnt(0)
  s_memtime s[14:15]
  s_waitcnt lgkmcnt(0)
  s_sub_u32 s14, s14, s12
  s_cmp_eq_u32 s18, 3
  s_cselect_b32 s20, s14, s20
  s_min_u32 s19, s19, s14
  s_sub_u32 s18, s18, 1
  s_cmp_lg_u32 s18, 0
  s_cbranch_scc1 L_{name}_outer
  s_mov_b32 exec_lo, 1
  s_mov_b32 exec_hi, 0
  v_mov_b32 v2, s19
  v_mov_b32 v3, s20
  s_mul_i32 s17, s2, NWPB
  s_add_u32 s17, s17, s10
  s_lshl_b32 s17, s17, 3
  v_mov_b32 v4, s17
  global_store_dwordx2 v4, v[2:3], s[4:5]
  s_waitcnt vmcnt(0)
  s_endpgm
""")
    out.append('.section .rodata,"a"')
    for name,(body,iters,pre,vgpr,acc,post) in kernels.items():
        out.append(f""".p2align 6
.amdhsa_kernel {name}
  .amdhsa_next_free_vgpr {vgpr}
  .amdhsa_next_free_sgpr 96
  .amdhsa_accum_offset {acc}
  .amdhsa_group_segment_fixed_size 0
  .amdhsa_kernarg_size 16
  .amdhsa_user_sgpr_count 2
  .amdhsa_user_sgpr_kernarg_segment_ptr 1
  .amdhsa_system_sgpr_workgroup_id_x 1
  .amdhsa_float_denorm_mode_32 3
.end_amdhsa_kernel""")
        meta.append(f"""  - .name: {name}
    .symbol: {name}.kd
    .kernarg_segment_size: 16
    .kernarg_segment_align: 8
    .group_segment_fixed_size: 0
    .private_segment_fixed_size: 0
    .wavefront_size: 64
    .sgpr_count: 96
    .vgpr_count: {vgpr}
    .max_flat_workgroup_size: 1024
    .args:
      - {{.name: kernargs, .size: 16, .offset: 0, .value_kind: by_value}}""")
    out.append(".amdgpu_metadata\n---\namdhsa.version: [1, 2]\namdhsa.kernels:\n" + "\n".join(meta) + "\n...\n.end_amdgpu_metadata")
    return "\n".join(out)

def build(fname, nwpb):
    s = emit().replace("NWPB", str(nwpb))
    open(fname + ".s", "w").write(s)
    subprocess.check_call(["clang","-x","assembler","-target","amdgcn-amd-amdhsa","-mcpu=gfx950",fname+".s","-o",fname+".co"])
```

```python
from gen_mb import *
V=192
def tile(sched, tt, shared):
    S=[16,32]; cur=S[tt%2]; nxt=S[(tt+1)%2]; P=48
    if shared:
        O=[56,128][tt%2]; Oprev=[56,128][(tt+1)%2]; C=[72,144][(tt+1)%2]; Q=[88,160][(tt+1)%2]
        kt=tt//2
        KB=[92,96]; VB=[[100,104],[108,112]]
        kq=KB[((tt+1)//2)%2]; vb=VB[kt%2]; vprev=VB[((tt-1)//2)%2]
    else:
        O=56; Oprev=56; C=72; Q=88
        KB=[92,96]; VB=[[100,104],[108,112]]
        kq=KB[(tt+1)%2]; vb=VB[tt%2]; vprev=VB[(tt+1)%2]
    b=[]; ie=ic=0
    for ch in sched:
        if ch=='e': b.append(f"  v_exp_f32 v{cur+ie}, v{cur+ie}"); ie+=1
        elif ch=='c': b.append(f"  v_cvt_pk_bf16_f32 v{P+ic}, v{cur+2*ic}, v{cur+2*ic+1}"); ic+=1
        elif ch=='Q': b.append(f"  v_mfma_f32_32x32x16_bf16 v[{nxt}:{nxt+15}], v[{kq}:{kq+3}], v[{Q}:{Q+3}], v[{C}:{C+15}]")
        elif ch=='A': b.append(f"  v_mfma_f32_32x32x16_bf16 v[{Oprev}:{Oprev+15}], v[{vprev[1]}:{vprev[1]+3}], v[{P+4}:{P+7}], v[{Oprev}:{Oprev+15}]")
        elif ch=='B': b.append(f"  v_mfma_f32_32x32x16_bf16 v[{O}:{O+15}], v[{vb[0]}:{vb[0]+3}], v[{P}:{P+3}], v[{O}:{O+15}]")
        elif ch in 'kvw':
            if shared and tt%2==1: continue
            r={'k':KB[(tt//2 if shared else tt)%2],'v':VB[((tt//2 if shared else tt)+1)%2][0],'w':VB[(tt//2 if shared else tt)%2][1]}[ch]
            b.append(f"  ds_read_b128 v[{r}:{r+3}], v120 offset:{(tt%8)*1024}")
        elif ch=='W': b.append("  s_waitcnt lgkmcnt(0)")
    return "\n".join(b)
pre = "  v_and_b32 v120, 63, v0\n  v_lshlrev_b32 v120, 4, v120\n"
S9="WQkeeeeeAveeeccccee" + "Bweeeeeecccc"
for nm, sh in (("base", False), ("shared", True)):
    kern(nm, "\n".join(tile(S9, tt, sh) for tt in range(8)), vgpr=V, acc=V, iters=50, pre=pre)
for nw in (4,8): build(f"mb14_w{nw}", nw)
open("run14.sh","w").write("for n in base shared; do ./runner mb14_w4.co $n 1 256 16384; ./runner mb14_w8.co $n 1 512 16384; done\n")
```
